```python
import torch

def _softmax(x, axis=-1):
    return torch.softmax(x, dim=axis)
def _gelu(x):
    return torch.nn.functional.gelu(x, approximate="tanh")
def _silu(x):
    return torch.nn.functional.silu(x)
def _sigmoid(x):
    return torch.sigmoid(x)
def _layernorm(x, axis=-1, eps=1e-5):
    m = x.mean(dim=axis, keepdim=True)
    v = x.var(dim=axis, keepdim=True, unbiased=False)
    return (x - m) / torch.sqrt(v + eps)
def _scatter_add(tgt, idx, src, axis=0):
    return tgt.clone().index_add_(axis, idx, src)
def _segment_sum(src, seg, n):
    out = torch.zeros((n,) + src.shape[1:], dtype=src.dtype)
    return out.index_add_(0, seg, src)
def _pad(x, pw):
    flat = tuple(v for pair in reversed(pw) for v in pair)
    return torch.nn.functional.pad(x, flat)

kernel_name = 'recurrent_scan__mha_block_cached__swiglu_ffn__decode'

def setup_inputs():

    _w = (lambda a: (lambda t: t.to(torch.bfloat16) if t.is_floating_point() else t)(torch.as_tensor(a)))
    def _A_setup():
        B, Sq, D = 4, 1, 512
        H, Sk, Dh = 32, 8192, 128
        return {
            "x": _w((lambda *s: torch.randn(*s, dtype=torch.bfloat16) * 0.05)(B, Sq, D)),
            "k_cache": _w((lambda *s: torch.randn(*s, dtype=torch.bfloat16) * 1.6)(B, H, Sk, Dh)),
            "v_cache": _w((lambda *s: torch.randn(*s, dtype=torch.bfloat16) * 0.2)(B, H, Sk, Dh)),
            "wq": _w((lambda *s: torch.randn(*s, dtype=torch.bfloat16) * 1.6)(D, H * Dh) * (D ** -0.5)),
            "wo": _w((lambda *s: torch.randn(*s, dtype=torch.bfloat16) * 0.2)(H * Dh, D) * ((H * Dh) ** -0.5)),
        }
    _A_in = _A_setup()

    def _B_setup():
        B, S, D, F = 4, 1, 512, 1792
        return {
            "x": _w((lambda *s: torch.randn(*s, dtype=torch.bfloat16) * 0.05)(B, S, D)),
            "w_gate": _w((lambda *s: torch.randn(*s, dtype=torch.bfloat16) * 0.1)(D, F)),
            "w_up": _w((lambda *s: torch.randn(*s, dtype=torch.bfloat16) * 0.1)(D, F)),
            "w_down": _w((lambda *s: torch.randn(*s, dtype=torch.bfloat16) * 0.1)(F, D)),
        }
    _B_in = _B_setup()

    return {
        "A_x": _A_in["x"],
        "A_k_cache": _A_in["k_cache"],
        "A_v_cache": _A_in["v_cache"],
        "A_wq": _A_in["wq"],
        "A_wo": _A_in["wo"],
        "B_x": _B_in["x"],
        "B_w_gate": _B_in["w_gate"],
        "B_w_up": _B_in["w_up"],
        "B_w_down": _B_in["w_down"],
    }

def reference(A_x, A_k_cache, A_v_cache, A_wq, A_wo, B_x, B_w_gate, B_w_up, B_w_down):
    def _A_ref(x, k_cache, v_cache, wq, wo):
        B, Sq, D = x.shape
        H, Dh = 32, 128
        q = (lambda x, *d: x.permute(*d))((x @ wq).reshape(B, Sq, H, Dh), 0, 2, 1, 3)
        scores = torch.einsum("bhqd,bhkd->bhqk", q, k_cache) * (Dh ** -0.5)
        p = _softmax(scores, axis=-1)
        o = torch.einsum("bhqk,bhkd->bhqd", p, v_cache)
        return (lambda x, *d: x.permute(*d))(o, 0, 2, 1, 3).reshape(B, Sq, H * Dh) @ wo

    def _B_ref(x, w_gate, w_up, w_down):
        g = _silu(x @ w_gate)
        u = x @ w_up
        return (g * u) @ w_down

    x = A_x
    xn = _layernorm(x, axis=-1)
    s = _A_ref(xn, A_k_cache, A_v_cache, A_wq, A_wo)
    g = _silu(_B_ref(xn, B_w_gate, B_w_up, B_w_down))
    return x + s * g
```

```python
import sys

NAME = "recurrent_scan__mha_block_cached__swiglu_ffn__decode_kernel"

HEADER = """; Kernarg layout for this problem (96 bytes, ptrs only, base s[0:1]):
"""

RING = 0
FL = 131072
FL_L = FL
FL_F = FL + 256
FL_Q = FL + 1280
FL_MLC = FL + 1536
ML = FL + 1792
ST = FL + 2048
XT = ST
QP = ST + 16384
QT = QP + 2048
FT = QT + 4096
LDS_TOTAL = FT + 8192
assert LDS_TOTAL == 163840

REG_SZ = 3072
LOG2E = 0x3fb8aa3b
SCALE = 0x3db504f3
EPS = 0x3727c5ac


class A:
    def __init__(self):
        self.l = []

    def __call__(self, s):
        for line in s.strip("\n").split("\n"):
            line = line.strip()
            if not line:
                continue
            if line.endswith(":"):
                self.l.append(line)
            else:
                self.l.append("  " + line)

    def text(self):
        return "\n".join(self.l) + "\n"


def allreduce(a, op, regs, tmps):
    n = len(regs)
    pad = max(0, 2 - (n - 1))
    for ror in (8, 4, 2, 1):
        if pad:
            a(f"s_nop {pad}")
        for r in regs:
            a(f"{op}_dpp v{r}, v{r}, v{r} row_ror:{ror} row_mask:0xf bank_mask:0xf")
    for sw in ("v_permlane16_swap_b32", "v_permlane32_swap_b32"):
        for r, t in zip(regs, tmps):
            a(f"v_mov_b32 v{t}, v{r}")
        a("s_nop 1")
        for r, t in zip(regs, tmps):
            a(f"{sw} v{r}, v{t}")
        a("s_nop 1")
        for r, t in zip(regs, tmps):
            a(f"{op} v{r}, v{r}, v{t}")


def bf16r(a, d, s):
    a(f"v_cvt_pk_bf16_f32 v{d}, v{s}, v{s}")
    a(f"v_and_b32 v{d}, 0xffff0000, v{d}")


def layernorm(a, xs, f, t):
    n = len(xs)
    for x, fb in zip(xs, f):
        for k in range(4):
            a(f"v_lshlrev_b32 v{fb+2*k}, 16, v{x+k}")
            a(f"v_and_b32 v{fb+2*k+1}, 0xffff0000, v{x+k}")
    for fb, tb in zip(f, t):
        a(f"v_add_f32 v{tb}, v{fb}, v{fb+1}")
        a(f"v_add_f32 v{tb+1}, v{fb+2}, v{fb+3}")
        a(f"v_add_f32 v{tb+2}, v{fb+4}, v{fb+5}")
        a(f"v_add_f32 v{tb+3}, v{fb+6}, v{fb+7}")
        a(f"v_add_f32 v{tb}, v{tb}, v{tb+1}")
        a(f"v_add_f32 v{tb+2}, v{tb+2}, v{tb+3}")
        a(f"v_add_f32 v{tb}, v{tb}, v{tb+2}")
    allreduce(a, "v_add_f32", [tb for tb in t], [tb + 1 for tb in t])
    for fb, tb in zip(f, t):
        a(f"v_mul_f32 v{tb}, 0x3b000000, v{tb}")
        a(f"v_sub_f32 v{tb+2}, v{fb}, v{tb}")
        a(f"v_mul_f32 v{tb+1}, v{tb+2}, v{tb+2}")
        for e in range(1, 8):
            a(f"v_sub_f32 v{tb+2}, v{fb+e}, v{tb}")
            a(f"v_fmac_f32 v{tb+1}, v{tb+2}, v{tb+2}")
    allreduce(a, "v_add_f32", [tb + 1 for tb in t], [tb + 2 for tb in t])
    for fb, tb in zip(f, t):
        a(f"v_mul_f32 v{tb+1}, 0x3b000000, v{tb+1}")
        bf16r(a, tb + 1, tb + 1)
        a(f"v_add_f32 v{tb+1}, {hex(EPS)}, v{tb+1}")
        bf16r(a, tb + 1, tb + 1)
        a(f"v_sqrt_f32 v{tb+1}, v{tb+1}")
        bf16r(a, tb, tb)
        bf16r(a, tb + 1, tb + 1)
        a(f"v_rcp_f32 v{tb+2}, v{tb+1}")
        for e in range(8):
            a(f"v_sub_f32 v{fb+e}, v{fb+e}, v{tb}")
        for e in range(8):
            bf16r(a, fb + e, fb + e)
        for e in range(8):
            a(f"v_mul_f32 v{tb+3}, v{fb+e}, v{tb+2}")
            a(f"v_fma_f32 v{fb+e}, -v{tb+3}, v{tb+1}, v{fb+e}")
            a(f"v_fma_f32 v{fb+e}, v{fb+e}, v{tb+2}, v{tb+3}")


def gen(W=20, spin=1 << 18, debug=False, wq_flags="", wo_flags="", ffn_flags="nt"):
    a = A()
    a(f"""
.amdgcn_target "amdgcn-amd-amdhsa--gfx950"
.text
.globl {NAME}
.p2align 8
.type {NAME},@function
{NAME}:
s_cmp_ge_u32 s2, 256
s_cbranch_scc1 L_exit
s_load_dwordx16 s[4:19], s[0:1], 0
s_load_dwordx8 s[20:27], s[0:1], 64
v_lshrrev_b32 v1, 6, v0
v_and_b32 v0, 63, v0
v_readfirstlane_b32 s3, v1
v_and_b32 v1, 7, v0
v_lshlrev_b32 v1, 8, v1
v_add_u32 v1, {FL}, v1
v_mov_b32 v2, 0
ds_write_b32 v1, v2
v_lshrrev_b32 v2, 4, v0
v_and_b32 v3, 15, v0
s_and_b32 s28, s2, 7
s_lshr_b32 s29, s2, 3
s_and_b32 s30, s29, 1
s_bfe_u32 s31, s29, 0x20001
s_lshl_b32 s31, s31, 3
s_or_b32 s31, s31, s28
s_lshr_b32 s32, s29, 3
s_lshl1_add_u32 s33, s31, s30
s_mov_b32 s34, {spin}
s_cmp_eq_u32 s3, 1
s_cbranch_scc1 L_side
s_cmp_gt_u32 s3, 1
s_cbranch_scc1 L_main
""")
    a("s_setprio 3")
    for t in range(4):
        a(f"v_add_u32 v{4+t}, {4*t}, v2")
        a(f"v_xor_b32 v{4+t}, v{4+t}, v3")
        a(f"v_lshlrev_b32 v{4+t}, 4, v{4+t}")
        a(f"v_lshl_add_u32 v{4+t}, v2, 8, v{4+t}")
    a(f"""
v_lshlrev_b32 v8, 4, v0
v_lshlrev_b32 v9, 2, v0
v_add_u32 v9, {FL_L}, v9
v_and_b32 v10, 3, v0
v_lshlrev_b32 v10, 8, v10
v_add_u32 v10, {FL_F}, v10
v_mov_b32 v11, 0
s_lshl_b32 s44, s32, 6
s_add_u32 s44, s44, s33
s_lshl_b32 s44, s44, 20
s_mov_b32 s45, 0
s_mov_b32 s46, 0
s_mov_b32 s47, s44
s_mov_b32 s38, 0x10000000
s_mov_b32 s39, 0x20000
s_mov_b32 s42, 0x10000000
s_mov_b32 s43, 0x20000
s_waitcnt lgkmcnt(0)
s_barrier
s_mov_b32 s36, s6
s_mov_b32 s37, s7
s_mov_b32 s40, s8
s_mov_b32 s41, s9
""")
    t_pub = (W - 1) % 16
    k_pub = (W - 1) >> 4

    def ld_block(tag, srd, voffs, nend):
        a(f"""
L_ld_{tag}:
s_waitcnt lgkmcnt(0)
s_and_b32 s48, s45, 3
s_sub_i32 s50, s45, 4
v_readlane_b32 s49, v11, s48
s_ashr_i32 s50, s50, 2
s_sub_i32 s51, s45, {k_pub}
s_cmp_ge_i32 s49, s50
s_cbranch_scc0 L_ldspin_{tag}
L_ldgo_{tag}:
""")
        for q in range(4):
            a("s_mov_b32 m0, s46")
            for t in range(4):
                i = 4 * q + t
                a(f"s_waitcnt vmcnt({W-1})")
                a(f"buffer_load_dwordx4 v{voffs[t]}, s[{srd}:{srd+3}], s47 offen offset:{t*1024} nt lds")
                if i == t_pub:
                    a("v_mov_b32 v12, s51")
                    a("ds_write_b32 v9, v12")
                if i == 10:
                    a("ds_read_b32 v11, v10")
            a("s_add_u32 s47, s47, 0x1000")
            a("s_add_u32 s46, s46, 0x1000")
        a(f"""
s_and_b32 s46, s46, 0x1ffff
s_add_u32 s45, s45, 1
s_cmp_lt_u32 s45, {nend}
s_cbranch_scc1 L_ld_{tag}
""")

    def ld_spin(tag):
        a(f"""
L_ldspin_{tag}:
s_sleep 1
ds_read_b32 v11, v10
s_waitcnt lgkmcnt(0)
v_readlane_b32 s49, v11, s48
s_sub_u32 s34, s34, 1
s_cbranch_scc1 L_exit
s_cmp_ge_i32 s49, s50
s_cbranch_scc1 L_ldgo_{tag}
s_branch L_ldspin_{tag}
""")

    ld_block("k", 36, [4, 5, 6, 7], 64)
    a("s_mov_b32 s47, s44")
    ld_block("v", 40, [8, 8, 8, 8], 128)
    for nb in range(128 - 1 - k_pub, 128):
        a(f"s_waitcnt vmcnt({16*(127-nb)})")
        a(f"v_mov_b32 v12, {nb+1}")
        a("ds_write_b32 v9, v12")
    a("s_waitcnt lgkmcnt(0)")
    a("s_endpgm")
    ld_spin("k")
    ld_spin("v")

    a(f"""
L_main:
s_setprio 1
s_sub_u32 s35, s3, 2
v_lshlrev_b32 v61, 4, v0
s_lshl_b32 s36, s32, 10
v_add_u32 v61, s36, v61
v_lshlrev_b32 v60, 13, v2
v_lshl_add_u32 v60, v3, 4, v60
s_lshl_b32 s44, s35, 20
s_lshl_b32 s45, s31, 8
s_add_u32 s44, s44, s45
s_mov_b32 s42, 0x400000
s_mov_b32 s43, 0x20000
s_waitcnt lgkmcnt(0)
s_barrier
global_load_dwordx4 v[96:99], v61, s[4:5]
s_mov_b32 s40, s10
s_mov_b32 s41, s11
""")
    for rg in range(32):
        a(f"buffer_load_dwordx4 v[{128+4*rg}:{131+4*rg}], v60, s[40:43], s44 offen {wq_flags}")
        if rg < 31:
            a("s_add_u32 s44, s44, 0x8000")
    a("""
v_and_b32 v8, 1, v3
v_cmp_eq_u32 vcc, 1, v8
v_mov_b32 v9, 0xffff
v_mov_b32 v10, 0xffff0000
v_bfe_u32 v8, v3, 1, 2
v_cndmask_b32 v9, v9, v10, vcc
""")
    for jj in range(4):
        a(f"v_cmp_eq_u32 vcc, {jj}, v8")
        a("s_nop 1")
        a(f"v_cndmask_b32 v{4+jj}, 0, v9, vcc")
    for kk in range(4):
        a(f"v_add_u32 v{52+kk}, {4*kk}, v2")
        a(f"v_xor_b32 v{52+kk}, v{52+kk}, v3")
        a(f"v_lshlrev_b32 v{52+kk}, 4, v{52+kk}")
        a(f"v_lshl_add_u32 v{52+kk}, v3, 8, v{52+kk}")
    a("v_lshlrev_b32 v60, 12, v2")
    a("v_lshl_add_u32 v60, v3, 4, v60")
    a("s_waitcnt vmcnt(32)")
    layernorm(a, [96], [100], [108])
    for g in range(4):
        a(f"v_cvt_pk_bf16_f32 v{112+2*g}, v{100+g}, v{100+g}")
        a(f"v_cvt_pk_bf16_f32 v{113+2*g}, v{104+g}, v{104+g}")
    a(f"v_lshlrev_b32 v61, 3, v0")
    a(f"v_add_u32 v61, {XT}, v61")
    for g in range(4):
        a(f"ds_write_b64 v61, v[{112+2*g}:{113+2*g}] offset:{g*512}")
    a(f"""
s_lshl_b32 s36, s35, 7
s_add_u32 s36, s36, {XT}
v_lshlrev_b32 v61, 9, v2
v_add_u32 v61, s36, v61
s_waitcnt lgkmcnt(0)
""")
    for i in range(8):
        a(f"ds_read_b128 v[{64+4*i}:{67+4*i}], v61 offset:{i*16}")
    a("s_waitcnt lgkmcnt(0)")

    def gemv32(xbase, wbase, acc, waits=None):
        def prep(rg):
            s = 8 + 4 * (rg & 1)
            for jj in range(4):
                a(f"v_and_b32 v{s+jj}, v{xbase+rg}, v{4+jj}")
        prep(0)
        for rg in range(32):
            if rg + 1 < 32:
                prep(rg + 1)
            else:
                a("s_nop 1")
            if waits:
                a(waits(rg))
            s = 8 + 4 * (rg & 1)
            c = "0" if rg == 0 else f"v[{acc}:{acc+3}]"
            a(f"v_mfma_f32_16x16x32_bf16 v[{acc}:{acc+3}], v[{s}:{s+3}], v[{wbase+4*rg}:{wbase+4*rg+3}], {c}")

    gemv32(64, 128, 16, waits=lambda rg: f"s_waitcnt vmcnt({31-rg})")
    a(f"""
s_lshl_b32 s36, s35, 9
s_add_u32 s36, s36, {QP}
v_and_b32 v63, 1, v2
v_lshlrev_b32 v63, 4, v63
v_lshl_add_u32 v63, v3, 5, v63
v_add_u32 v63, s36, v63
v_mov_b32 v61, {FL_Q}
v_mov_b32 v62, 1
s_nop 3
ds_write_b128 v63, v[16:19]
s_waitcnt lgkmcnt(0)
s_mov_b64 exec, 1
ds_add_u32 v61, v62
s_mov_b64 exec, -1
L_qwait:
ds_read_b32 v62, v61
s_waitcnt lgkmcnt(0)
v_readfirstlane_b32 s36, v62
s_sub_u32 s34, s34, 1
s_cbranch_scc1 L_exit
s_cmp_lt_u32 s36, 4
s_cbranch_scc1 L_qwait
v_lshlrev_b32 v61, 3, v0
v_add_u32 v61, {QP}, v61
""")
    for p in range(4):
        a(f"ds_read_b64 v[{64+2*p}:{65+2*p}], v61 offset:{p*512}")
    a(f"""
s_lshl_b32 s36, s35, 8
s_add_u32 s36, s36, {QT}
v_lshl_add_u32 v61, v0, 2, s36
v_lshl_add_u32 v62, v2, 4, s36
s_waitcnt lgkmcnt(0)
v_add_f32 v64, v64, v66
v_add_f32 v65, v65, v67
v_add_f32 v68, v68, v70
v_add_f32 v69, v69, v71
v_add_f32 v64, v64, v68
v_add_f32 v65, v65, v69
v_cvt_pk_bf16_f32 v64, v64, v65
ds_write_b32 v61, v64
s_waitcnt lgkmcnt(0)
""")
    for kk in range(4):
        a(f"ds_read_b128 v[{20+4*kk}:{23+4*kk}], v62 offset:{kk*64}")
    if debug:
        a(f"""
s_cmp_lg_u32 s35, 0
s_cbranch_scc1 L_dbgq
s_lshl_b32 s36, s2, 8
s_add_u32 s36, s36, 0x100000
v_lshl_add_u32 v61, v0, 2, s36
global_store_dword v61, v64, s[26:27]
L_dbgq:
""")
    a(f"""
s_mov_b32 s36, s35
s_mov_b32 s37, 0
v_mov_b32 v62, 0xff800000
v_mov_b32 v61, {FL_L}
s_lshl_b32 s38, s35, 8
s_add_u32 s38, s38, {FL_F}
v_lshl_add_u32 v1, v0, 2, s38
s_lshl_b32 s38, s35, 12
s_add_u32 s38, s38, {ST}
v_lshl_add_u32 v16, v0, 2, s38
v_mov_b32 v17, v16
s_mov_b32 s40, s12
s_mov_b32 s41, s13
s_lshl_b32 s44, s31, 17
s_lshl_b32 s45, s35, 8
s_add_u32 s44, s44, s45
v_lshlrev_b32 v18, 10, v2
v_lshl_add_u32 v18, v3, 4, v18
""")

    def wait_block(tag):
        a(f"""
L_w_{tag}:
ds_read_b32 v19, v61
s_waitcnt lgkmcnt(0)
v_readfirstlane_b32 s38, v19
s_cmp_gt_i32 s38, s36
s_cbranch_scc1 L_go_{tag}
s_sub_u32 s34, s34, 1
s_cbranch_scc1 L_exit
s_sleep 1
s_branch L_w_{tag}
L_go_{tag}:
s_and_b32 s38, s36, 7
s_lshl_b32 s38, s38, 14
s_add_u32 s37, s37, 1
""")

    for part in range(4):
        for i in range(8):
            rg = part * 8 + i
            a(f"buffer_load_dwordx4 v[{128+4*rg}:{131+4*rg}], v18, s[40:43], s44 offen {wo_flags}")
            a("s_add_u32 s44, s44, 0x1000")
        tag = f"k{part}"
        wait_block(tag)
        for kk in range(4):
            a(f"v_or_b32 v{56+kk}, s38, v{52+kk}")
        a("v_mov_b32 v19, s37")
        for gp in range(4):
            for kk in range(4):
                r = 64 + 4 * (4 * gp + kk)
                a(f"ds_read_b128 v[{r}:{r+3}], v{56+kk} offset:{gp*4096}")
        a("ds_write_b32 v1, v19")
        for gp in range(4):
            for kk in range(4):
                i = 4 * gp + kk
                r = 64 + 4 * i
                a(f"s_waitcnt lgkmcnt({min(15, 16-i)})")
                c = "0" if kk == 0 else f"v[{36+4*gp}:{39+4*gp}]"
                a(f"v_mfma_f32_16x16x32_bf16 v[{36+4*gp}:{39+4*gp}], v[{20+4*kk}:{23+4*kk}], v[{r}:{r+3}], {c}")
        a(f"""
v_mov_b32 v19, v36
v_mov_b32_dpp v19, v40 quad_perm:[0,1,2,3] row_mask:0x2 bank_mask:0xf
v_mov_b32_dpp v19, v44 quad_perm:[0,1,2,3] row_mask:0x4 bank_mask:0xf
s_add_u32 s36, s36, 4
s_nop 4
v_mov_b32_dpp v19, v48 quad_perm:[0,1,2,3] row_mask:0x8 bank_mask:0xf
""")
        bf16r(a, 19, 19)
        a(f"v_mul_f32 v19, {hex(SCALE)}, v19")
        bf16r(a, 19, 19)
        a(f"""
v_max_f32 v62, v62, v19
ds_write_b32 v17, v19
v_add_u32 v17, 0x100, v17
s_cmp_lt_u32 s37, {4*part+4}
s_cbranch_scc1 L_w_{tag}
""")
    for i in range(16):
        a(f"ds_read_b32 v{64+i}, v16 offset:{i*256}")
    allreduce(a, "v_max_f32", [62], [19])
    a(f"""
s_mov_b32 s38, {hex(LOG2E)}
v_mov_b32 v59, 0
s_waitcnt lgkmcnt(0)
""")
    for i in range(16):
        a(f"v_sub_f32 v{64+i}, v{64+i}, v62")
    for i in range(16):
        a(f"v_mul_f32 v{64+i}, s38, v{64+i}")
    for i in range(16):
        a(f"v_exp_f32 v{64+i}, v{64+i}")
    a("s_nop 0")
    for i in range(16):
        a(f"v_add_f32 v59, v59, v{64+i}")
        a(f"v_cvt_pk_bf16_f32 v{64+i}, v{64+i}, v{64+i}")
    for i in range(16):
        a(f"ds_write_b32 v16, v{64+i} offset:{i*256}")
    allreduce(a, "v_add_f32", [59], [19])
    a(f"""
v_mov_b32 v58, v62
s_lshl_b32 s39, s35, 3
s_add_u32 s39, s39, {ML}
v_mov_b32 v19, s39
v_mov_b32 v56, {FL_MLC}
v_mov_b32 v57, 1
s_mov_b64 exec, 1
ds_write_b64 v19, v[58:59]
ds_add_u32 v56, v57
s_mov_b64 exec, -1
v_mov_b32 v17, v16
v_mov_b32 v36, 0
v_mov_b32 v37, 0
v_mov_b32 v38, 0
v_mov_b32 v39, 0
""")
    wait_block("v")
    a("v_or_b32 v56, s38, v60")
    a("v_mov_b32 v19, s37")
    a("ds_read_b32 v40, v17")
    for t in range(16):
        a(f"ds_read_b128 v[{64+4*t}:{67+4*t}], v56 offset:{t*256}")
    a("ds_write_b32 v1, v19")
    a("v_add_u32 v17, 0x100, v17")
    a("s_add_u32 s36, s36, 4")
    a("s_waitcnt lgkmcnt(15)")

    def prepv(t):
        s = 8 + 4 * (t & 1)
        for jj in range(4):
            a(f"v_and_b32_dpp v{s+jj}, v40, v{4+jj} row_newbcast:{t} row_mask:0xf bank_mask:0xf")
    prepv(0)
    for t in range(16):
        if t + 1 < 16:
            prepv(t + 1)
        else:
            a("s_nop 1")
        a(f"s_waitcnt lgkmcnt({min(15, 16-t)})")
        s = 8 + 4 * (t & 1)
        a(f"v_mfma_f32_16x16x32_bf16 v[36:39], v[{s}:{s+3}], v[{64+4*t}:{67+4*t}], v[36:39]")
    a(f"""
s_cmp_lg_u32 s37, 24
s_cbranch_scc1 L_nocw
L_mlwait:
v_mov_b32 v56, {FL_MLC}
ds_read_b32 v19, v56
s_waitcnt lgkmcnt(0)
v_readfirstlane_b32 s38, v19
s_sub_u32 s34, s34, 1
s_cbranch_scc1 L_exit
s_cmp_lt_u32 s38, 4
s_cbranch_scc1 L_mlwait
v_and_b32 v56, 3, v0
v_lshlrev_b32 v56, 3, v56
v_add_u32 v56, {ML}, v56
ds_read_b64 v[44:45], v56
s_mov_b32 s38, {hex(LOG2E)}
s_waitcnt lgkmcnt(0)
v_max_f32_dpp v42, v44, v44 quad_perm:[1,0,3,2] row_mask:0xf bank_mask:0xf
s_nop 1
v_max_f32_dpp v42, v42, v42 quad_perm:[2,3,0,1] row_mask:0xf bank_mask:0xf
v_sub_f32 v44, v44, v42
v_mul_f32 v44, s38, v44
v_exp_f32 v44, v44
v_sub_f32 v41, v62, v42
v_mul_f32 v43, v44, v45
v_mul_f32 v41, s38, v41
v_exp_f32 v41, v41
v_add_f32_dpp v43, v43, v43 quad_perm:[1,0,3,2] row_mask:0xf bank_mask:0xf
s_nop 1
v_add_f32_dpp v43, v43, v43 quad_perm:[2,3,0,1] row_mask:0xf bank_mask:0xf
v_rcp_f32 v44, v43
s_nop 0
v_mul_f32 v41, v41, v44
v_min_u32 v42, -2, v42
v_min_u32 v43, -2, v43
L_nocw:
s_cmp_lt_u32 s37, 32
s_cbranch_scc1 L_w_v
""")
    a(f"""
s_lshl_b32 s36, s35, 10
s_add_u32 s36, s36, {QT}
v_lshlrev_b32 v61, 3, v0
v_add_u32 v61, {QP}, v61
v_and_b32 v56, 1, v0
v_lshlrev_b32 v56, 8, v56
v_lshrrev_b32 v57, 1, v0
v_mul_f32 v36, v36, v41
v_mul_f32 v37, v37, v41
v_mul_f32 v38, v38, v41
v_mul_f32 v39, v39, v41
ds_write_b128 v63, v[36:39]
v_lshl_add_u32 v56, v57, 2, v56
v_add_u32 v56, s36, v56
v_lshrrev_b32 v57, 3, v3
v_lshlrev_b32 v57, 9, v57
v_lshl_add_u32 v57, v2, 7, v57
v_add_u32 v57, s36, v57
s_waitcnt lgkmcnt(0)
s_barrier
""")
    for p in range(4):
        a(f"ds_read_b64 v[{64+2*p}:{65+2*p}], v61 offset:{p*512}")
    a(f"""
s_lshl_b32 s36, s32, 6
s_lshl_b32 s37, s35, 4
s_add_u32 s37, s36, s37
s_mul_i32 s37, s37, {REG_SZ}
s_lshl_b32 s38, s33, 5
s_add_u32 s37, s37, s38
s_movk_i32 s39, {REG_SZ}
v_and_b32 v58, 1, v2
v_lshlrev_b32 v58, 4, v58
v_mad_u32_u24 v58, v3, s39, v58
v_add_u32 v58, s37, v58
s_waitcnt lgkmcnt(0)
v_add_f32 v64, v64, v66
v_add_f32 v65, v65, v67
v_add_f32 v68, v68, v70
v_add_f32 v69, v69, v71
v_add_f32 v64, v64, v68
v_add_f32 v65, v65, v69
v_cvt_pk_bf16_f32 v66, v64, v64
v_cvt_pk_bf16_f32 v67, v65, v65
ds_write_b32 v56, v66
ds_write_b32 v56, v67 offset:128
v_and_b32 v68, 0xffff0000, v66
v_and_b32 v69, 0xffff0000, v67
v_sub_f32 v68, v64, v68
v_sub_f32 v69, v65, v69
v_cvt_pk_bf16_f32 v68, v68, v68
v_cvt_pk_bf16_f32 v69, v69, v69
ds_write_b32 v56, v68 offset:512
ds_write_b32 v56, v69 offset:640
""")
    if debug:
        a(f"""
s_cmp_lg_u32 s35, 0
s_cbranch_scc1 L_dbgo
s_lshl_b32 s36, s2, 9
s_add_u32 s36, s36, 0x120000
v_lshl_add_u32 v61, v0, 3, s36
global_store_dwordx2 v61, v[64:65], s[26:27]
s_nop 1
L_dbgo:
""")
    a("s_waitcnt lgkmcnt(0)")
    for i in range(8):
        a(f"ds_read_b128 v[{64+4*i}:{67+4*i}], v57 offset:{i*16}")
    a("s_waitcnt vmcnt(0) lgkmcnt(0)")
    gemv32(64, 128, 16)
    a(f"""
s_lshl_b32 s36, s32, 6
s_mul_i32 s36, s36, {REG_SZ}
s_lshl_b32 s38, s33, 3
s_add_u32 s36, s36, s38
v_mov_b32 v59, s36
v_mad_u32_u24 v59, v0, s39, v59
s_nop 2
v_mov_b32 v20, v16
v_mov_b32 v21, v17
v_mov_b32 v22, v18
v_mov_b32 v23, v19
s_nop 1
v_permlane32_swap_b32 v16, v20
v_permlane32_swap_b32 v17, v21
v_permlane32_swap_b32 v18, v22
v_permlane32_swap_b32 v19, v23
s_nop 1
v_add_f32 v16, v16, v20
v_add_f32 v17, v17, v21
v_add_f32 v18, v18, v22
v_add_f32 v19, v19, v23
v_min_u32 v16, -2, v16
v_min_u32 v17, -2, v17
v_min_u32 v18, -2, v18
v_min_u32 v19, -2, v19
s_mov_b32 exec_hi, 0
global_store_dwordx4 v58, v[16:19], s[26:27] sc1
s_mov_b64 exec, -1
s_cmp_lg_u32 s35, 0
s_cbranch_scc1 L_exit
global_store_dwordx2 v59, v[42:43], s[26:27] offset:2560 sc1
s_endpgm
""")

    a(f"""
L_side:
s_mul_i32 s36, s2, {REG_SZ}
v_lshlrev_b32 v1, 4, v0
v_add_u32 v60, s36, v1
v_mov_b32 v8, -1
v_mov_b32 v9, -1
v_mov_b32 v10, -1
v_mov_b32 v11, -1
v_mov_b32 v12, 0
v_mov_b32 v13, 1
s_waitcnt lgkmcnt(0)
s_barrier
global_store_dwordx4 v60, v[8:11], s[26:27] sc1
global_store_dwordx4 v60, v[8:11], s[26:27] offset:1024 sc1
global_store_dwordx4 v60, v[8:11], s[26:27] offset:2048 sc1
s_waitcnt vmcnt(0)
s_mov_b64 exec, 1
global_atomic_add v12, v13, s[24:25] sc1
s_mov_b64 exec, -1
s_cmp_ge_u32 s2, 14
s_cbranch_scc1 L_cwait
""")
    for b in range(4):
        a(f"global_load_dwordx4 v[{16+4*b}:{19+4*b}], v1, s[4:5] offset:{b*1024}")
    a(f"""
s_mov_b32 s36, s16
s_mov_b32 s37, s17
s_mov_b32 s38, {512*3584}
s_mov_b32 s39, 0x20000
s_mov_b32 s40, s18
s_mov_b32 s41, s19
s_mov_b32 s42, {512*3584}
s_mov_b32 s43, 0x20000
s_mov_b32 s44, s20
s_mov_b32 s45, s21
s_mov_b32 s46, {1792*1024}
s_mov_b32 s47, 0x20000
s_movk_i32 s48, 3584
v_mul_lo_u32 v61, v2, s48
v_lshl_add_u32 v61, v3, 4, v61
s_lshl_b32 s48, s2, 8
""")
    a("""
v_and_b32 v8, 1, v3
v_cmp_eq_u32 vcc, 1, v8
v_mov_b32 v9, 0xffff
v_mov_b32 v10, 0xffff0000
v_bfe_u32 v8, v3, 1, 2
v_cndmask_b32 v9, v9, v10, vcc
""")
    for jj in range(4):
        a(f"v_cmp_eq_u32 vcc, {jj}, v8")
        a("s_nop 1")
        a(f"v_cndmask_b32 v{4+jj}, 0, v9, vcc")

    def ffn1_loads(hb):
        for i in range(8):
            r = 128 + 64 * hb + 8 * i
            a(f"buffer_load_dwordx4 v[{r}:{r+3}], v61, s[36:39], s48 offen {ffn_flags}")
            a(f"buffer_load_dwordx4 v[{r+4}:{r+7}], v61, s[40:43], s48 offen {ffn_flags}")
            a(f"s_add_u32 s48, s48, {4*3584}")
    ffn1_loads(0)
    ffn1_loads(1)
    a("s_waitcnt vmcnt(32)")
    layernorm(a, [16, 20, 24, 28], [64, 72, 80, 88], [96, 100, 104, 108])
    a(f"v_lshlrev_b32 v62, 3, v0")
    a(f"v_add_u32 v62, {FT}, v62")
    for b in range(4):
        for g in range(4):
            a(f"v_cvt_pk_bf16_f32 v{112+2*g}, v{64+8*b+g}, v{64+8*b+g}")
            a(f"v_cvt_pk_bf16_f32 v{113+2*g}, v{68+8*b+g}, v{68+8*b+g}")
        for g in range(4):
            a(f"ds_write_b64 v62, v[{112+2*g}:{113+2*g}] offset:{b*2048+g*512}")
    a(f"""
v_lshrrev_b32 v62, 3, v3
v_lshlrev_b32 v62, 11, v62
v_lshl_add_u32 v62, v2, 9, v62
v_add_u32 v62, {FT}, v62
""")
    for r in range(32, 48):
        a(f"v_mov_b32 v{r}, 0")
    a("s_mov_b32 s49, 0")
    a("s_waitcnt lgkmcnt(0)")
    a("L_ffn1:")
    for hb in range(2):
        for m in range(2):
            for i2 in range(2):
                a(f"ds_read_b128 v[{64+8*m+4*i2}:{67+8*m+4*i2}], v62 offset:{m*4096+hb*32+i2*16}")
        a("s_waitcnt vmcnt(16) lgkmcnt(0)")
        for i in range(8):
            s = 8 + 8 * (i & 1)
            for m in range(2):
                for jj in range(4):
                    a(f"v_and_b32 v{s+4*m+jj}, v{64+8*m+i}, v{4+jj}")
            a("s_nop 1")
            r = 128 + 64 * hb + 8 * i
            for m in range(2):
                a(f"v_mfma_f32_16x16x32_bf16 v[{32+4*m}:{35+4*m}], v[{s+4*m}:{s+4*m+3}], v[{r}:{r+3}], v[{32+4*m}:{35+4*m}]")
                a(f"v_mfma_f32_16x16x32_bf16 v[{40+4*m}:{43+4*m}], v[{s+4*m}:{s+4*m+3}], v[{r+4}:{r+7}], v[{40+4*m}:{43+4*m}]")
        a("s_nop 7")
        ffn1_loads(hb)
    a(f"""
v_add_u32 v62, 64, v62
s_add_u32 s49, s49, 1
s_cmp_lt_u32 s49, 8
s_cbranch_scc1 L_ffn1
s_waitcnt vmcnt(0)
""")
    a("""
v_lshlrev_b32 v61, 10, v2
v_lshl_add_u32 v61, v3, 4, v61
s_lshl_b32 s48, s2, 17
""")

    def ffn2_loads(hb):
        for i in range(4):
            for cb in range(4):
                r = 128 + 64 * hb + 16 * i + 4 * cb
                a(f"buffer_load_dwordx4 v[{r}:{r+3}], v61, s[44:47], s48 offen offset:{cb*256} {ffn_flags}")
            a("s_add_u32 s48, s48, 0x1000")
    ffn2_loads(0)
    ffn2_loads(1)
    a(f"s_mov_b32 s50, {hex(LOG2E ^ 0x80000000)}")
    for k in range(8):
        bf16r(a, 32 + k, 32 + k)
        bf16r(a, 40 + k, 40 + k)
    for k in range(8):
        a(f"v_mul_f32 v{64+k}, s50, v{32+k}")
    for k in range(8):
        a(f"v_exp_f32 v{64+k}, v{64+k}")
    a("s_nop 0")
    for k in range(8):
        a(f"v_add_f32 v{64+k}, 1.0, v{64+k}")
    for k in range(8):
        a(f"v_rcp_f32 v{64+k}, v{64+k}")
    a("s_nop 0")
    for k in range(8):
        a(f"v_mul_f32 v{64+k}, v{64+k}, v{32+k}")
    for k in range(8):
        bf16r(a, 64 + k, 64 + k)
    for k in range(8):
        a(f"v_mul_f32 v{64+k}, v{64+k}, v{40+k}")
    for k in range(8):
        a(f"v_cvt_pk_bf16_f32 v{64+k}, v{64+k}, v{64+k}")
    a(f"""
v_lshrrev_b32 v62, 1, v2
v_lshlrev_b32 v62, 9, v62
v_lshl_add_u32 v62, v3, 3, v62
v_and_b32 v63, 1, v2
v_lshl_add_u32 v62, v63, 2, v62
v_add_u32 v62, {FT}, v62
""")
    for m in range(2):
        for r in range(4):
            a(f"ds_write_b32 v62, v{64+4*m+r} offset:{m*1024+r*128}")
    a(f"""
v_lshrrev_b32 v62, 3, v3
v_lshlrev_b32 v62, 9, v62
v_lshl_add_u32 v62, v2, 7, v62
v_add_u32 v62, {FT}, v62
""")
    for r in range(80, 112):
        a(f"v_mov_b32 v{r}, 0")
    a("s_mov_b32 s49, 0")
    a("s_waitcnt lgkmcnt(0)")
    a("L_ffn2:")
    for hb in range(2):
        for m in range(2):
            a(f"ds_read_b128 v[{64+4*m}:{67+4*m}], v62 offset:{m*1024+hb*16}")
        a("s_waitcnt vmcnt(16) lgkmcnt(0)")
        for i in range(4):
            s = 8 + 8 * (i & 1)
            for m in range(2):
                for jj in range(4):
                    a(f"v_and_b32 v{s+4*m+jj}, v{64+4*m+i}, v{4+jj}")
            a("s_nop 1")
            for cb in range(4):
                r = 128 + 64 * hb + 16 * i + 4 * cb
                for m in range(2):
                    ac = 80 + 8 * cb + 4 * m
                    a(f"v_mfma_f32_16x16x32_bf16 v[{ac}:{ac+3}], v[{s+4*m}:{s+4*m+3}], v[{r}:{r+3}], v[{ac}:{ac+3}]")
        a("s_nop 7")
        a("s_cmp_ge_u32 s49, 3")
        a(f"s_cbranch_scc1 L_ffn2skip{hb}")
        ffn2_loads(hb)
        a(f"s_branch L_ffn2cont{hb}")
        a(f"L_ffn2skip{hb}:")
        a("s_waitcnt vmcnt(0)")
        a(f"L_ffn2cont{hb}:")
    a(f"""
v_add_u32 v62, 32, v62
s_add_u32 s49, s49, 1
s_cmp_lt_u32 s49, 4
s_cbranch_scc1 L_ffn2
s_nop 7
""")
    for r in range(80, 112):
        a(f"v_min_u32 v{r}, -2, v{r}")
    a(f"""
L_cwait:
v_mov_b32 v12, 0
global_load_dword v13, v12, s[24:25] sc1
s_waitcnt vmcnt(0)
v_readfirstlane_b32 s36, v13
s_cmp_ge_u32 s36, 256
s_cbranch_scc1 L_cok
s_sub_u32 s34, s34, 1
s_cbranch_scc1 L_exit
s_sleep 8
s_branch L_cwait
L_cok:
s_cmp_ge_u32 s2, 14
s_cbranch_scc1 L_dnwait0
""")
    a(f"""
s_movk_i32 s39, {REG_SZ}
v_lshrrev_b32 v61, 1, v2
v_lshl_add_u32 v61, v61, 6, v3
v_mul_lo_u32 v61, v61, s39
v_and_b32 v63, 1, v2
v_lshl_add_u32 v61, v63, 4, v61
s_lshl_b32 s36, s2, 5
v_add_u32 v61, s36, v61
""")
    for cb in range(4):
        for m in range(2):
            ac = 80 + 8 * cb + 4 * m
            off = (128 * m + 16 * cb) * REG_SZ
            a(f"v_add_u32 v{62+m}, {off}, v61")
            a(f"global_store_dwordx4 v{62+m}, v[{ac}:{ac+3}], s[26:27] offset:2048 sc1")
    a(f"""
L_dnwait0:
v_mov_b32 v16, 0
v_mov_b32 v17, 0
v_mov_b32 v18, 0
v_mov_b32 v19, 0
s_lshl_b32 s36, s2, 4
v_and_b32 v61, 1, v0
v_lshl_add_u32 v61, v61, 3, s36
global_load_dwordx2 v[24:25], v61, s[4:5]
s_mov_b64 exec, 0x0fffffff
L_dnwait:
global_load_dwordx4 v[16:19], v60, s[26:27] offset:2048 sc1
s_waitcnt vmcnt(0)
v_max3_u32 v20, v16, v17, v18
v_max_u32 v20, v20, v19
v_cmp_eq_u32 vcc, -1, v20
s_cmp_eq_u64 vcc, 0
s_cbranch_scc1 L_dnok
s_sub_u32 s34, s34, 1
s_cbranch_scc1 L_exit
s_sleep 32
s_branch L_dnwait
L_dnok:
s_mov_b64 exec, -1
""")

    def reduce_pairs(regs, tmps):
        a("s_nop 1")
        for r in regs:
            a(f"v_add_f32_dpp v{r}, v{r}, v{r} quad_perm:[2,3,0,1] row_mask:0xf bank_mask:0xf")
        for ror in (4, 8):
            for r in regs:
                a(f"v_add_f32_dpp v{r}, v{r}, v{r} row_ror:{ror} row_mask:0xf bank_mask:0xf")
        for sw in ("v_permlane16_swap_b32", "v_permlane32_swap_b32"):
            for r, t in zip(regs, tmps):
                a(f"v_mov_b32 v{t}, v{r}")
            a("s_nop 1")
            for r, t in zip(regs, tmps):
                a(f"{sw} v{r}, v{t}")
            a("s_nop 1")
            for r, t in zip(regs, tmps):
                a(f"v_add_f32 v{r}, v{r}, v{t}")

    reduce_pairs([16, 17, 18, 19], [20, 21, 22, 23])
    a(f"s_mov_b32 s50, {hex(LOG2E ^ 0x80000000)}")
    for k in range(4):
        bf16r(a, 16 + k, 16 + k)
    for k in range(4):
        a(f"v_mul_f32 v{20+k}, s50, v{16+k}")
    for k in range(4):
        a(f"v_exp_f32 v{20+k}, v{20+k}")
    a("s_nop 0")
    for k in range(4):
        a(f"v_add_f32 v{20+k}, 1.0, v{20+k}")
    for k in range(4):
        a(f"v_rcp_f32 v{20+k}, v{20+k}")
    a("s_nop 0")
    for k in range(4):
        a(f"v_mul_f32 v{16+k}, v{16+k}, v{20+k}")
    for k in range(4):
        bf16r(a, 16 + k, 16 + k)
    a(f"""
v_lshlrev_b32 v26, 16, v24
v_and_b32 v27, 0xffff0000, v24
v_lshlrev_b32 v28, 16, v25
v_and_b32 v29, 0xffff0000, v25
s_mul_i32 s36, s2, {REG_SZ}
v_lshrrev_b32 v62, 1, v0
v_lshl_add_u32 v62, v62, 3, s36
s_mov_b32 s50, {hex(LOG2E)}
s_barrier
L_ywait:
global_load_dwordx4 v[32:35], v60, s[26:27] sc1
global_load_dwordx4 v[36:39], v60, s[26:27] offset:1024 sc1
global_load_dwordx2 v[40:41], v62, s[26:27] offset:2560 sc1
global_load_dwordx2 v[42:43], v62, s[26:27] offset:2816 sc1
s_waitcnt vmcnt(0)
v_max3_u32 v44, v32, v33, v34
v_max3_u32 v45, v35, v36, v37
v_max3_u32 v46, v38, v39, v40
v_max3_u32 v47, v41, v42, v43
v_max3_u32 v44, v44, v45, v46
v_max_u32 v44, v44, v47
v_cmp_eq_u32 vcc, -1, v44
s_cmp_eq_u64 vcc, 0
s_cbranch_scc1 L_yok
s_mov_b64 exec, vcc
s_sub_u32 s34, s34, 1
s_cbranch_scc1 L_exit
s_sleep 1
s_branch L_ywait
L_yok:
s_mov_b64 exec, -1
s_nop 1
v_max_f32_dpp v44, v40, v40 quad_perm:[2,3,0,1] row_mask:0xf bank_mask:0xf
v_max_f32_dpp v45, v42, v42 quad_perm:[2,3,0,1] row_mask:0xf bank_mask:0xf
v_sub_f32 v44, v40, v44
v_sub_f32 v45, v42, v45
v_mul_f32 v44, s50, v44
v_mul_f32 v45, s50, v45
v_exp_f32 v44, v44
v_exp_f32 v45, v45
s_nop 0
v_mul_f32 v44, v44, v41
v_mul_f32 v45, v45, v43
s_nop 1
v_add_f32_dpp v46, v44, v44 quad_perm:[2,3,0,1] row_mask:0xf bank_mask:0xf
v_add_f32_dpp v47, v45, v45 quad_perm:[2,3,0,1] row_mask:0xf bank_mask:0xf
v_rcp_f32 v46, v46
v_rcp_f32 v47, v47
s_nop 0
v_mul_f32 v44, v44, v46
v_mul_f32 v45, v45, v47
v_mul_f32 v32, v32, v44
v_mul_f32 v33, v33, v44
v_mul_f32 v34, v34, v44
v_mul_f32 v35, v35, v44
v_fmac_f32 v32, v36, v45
v_fmac_f32 v33, v37, v45
v_fmac_f32 v34, v38, v45
v_fmac_f32 v35, v39, v45
""")
    reduce_pairs([32, 33, 34, 35], [36, 37, 38, 39])
    for k in range(4):
        bf16r(a, 32 + k, 32 + k)
    for k in range(4):
        a(f"v_mul_f32 v{32+k}, v{32+k}, v{16+k}")
    for k in range(4):
        bf16r(a, 32 + k, 32 + k)
    for k in range(4):
        a(f"v_add_f32 v{32+k}, v{32+k}, v{26+k}")
    a(f"""
v_cvt_pk_bf16_f32 v32, v32, v33
v_cvt_pk_bf16_f32 v33, v34, v35
s_mov_b64 exec, 3
global_store_dwordx2 v61, v[32:33], s[22:23]
L_exit:
s_endpgm
""")
    a(f"""
.section .rodata,"a"
.p2align 6
.amdhsa_kernel {NAME}
.amdhsa_next_free_vgpr 256
.amdhsa_next_free_sgpr 64
.amdhsa_accum_offset 256
.amdhsa_group_segment_fixed_size 0
.amdhsa_kernarg_size 96
.amdhsa_user_sgpr_count 2
.amdhsa_user_sgpr_kernarg_segment_ptr 1
.amdhsa_system_sgpr_workgroup_id_x 1
.amdhsa_float_denorm_mode_32 3
.end_amdhsa_kernel
""")
    return HEADER + f"; @launch grid=(256,1,1) block=(384,1,1) lds={LDS_TOTAL}\n" + a.text()


if __name__ == "__main__":
    import argparse
    p = argparse.ArgumentParser()
    p.add_argument("-o", default="recurrent_scan__mha_block_cached__swiglu_ffn__decode.s")
    p.add_argument("-W", type=int, default=20)
    p.add_argument("--debug", action="store_true")
    p.add_argument("--wq", default="")
    p.add_argument("--wo", default="")
    p.add_argument("--ffn", default="nt")
    args = p.parse_args()
    open(args.o, "w").write(gen(W=args.W, debug=args.debug, wq_flags=args.wq, wo_flags=args.wo, ffn_flags=args.ffn))
```

```python
import sys

NAME = "recurrent_scan__mha_block_cached__swiglu_ffn__decode_kernel"

HEADER = """; Kernarg layout for this problem (96 bytes, ptrs only, base s[0:1]):
"""

RING = 0
FL = 131072
FL_L = FL
FL_F = FL + 256
FL_Q = FL + 1280
FL_MLC = FL + 1536
FL_MLW = FL + 1792
ML = FL + 1792 + 64
MLW = FL + 1792 + 128
ST = FL + 2048
XT = ST
QP = ST + 16384
QT = QP + 2048
FT = QT + 4096
LDS_TOTAL = FT + 8192
assert LDS_TOTAL == 163840

YB = 0
MLB = 0x80000
DNB = 0x81000
NF = 14
RED0 = 64
LOG2E = 0x3fb8aa3b
SCALE = 0x3db504f3
EPS = 0x3727c5ac


class A:
    def __init__(self):
        self.l = []

    def __call__(self, s):
        for line in s.strip("\n").split("\n"):
            line = line.strip()
            if not line:
                continue
            if line.endswith(":"):
                self.l.append(line)
            else:
                self.l.append("  " + line)

    def text(self):
        return "\n".join(self.l) + "\n"


def allreduce(a, op, regs, tmps):
    n = len(regs)
    pad = max(0, 2 - (n - 1))
    for ror in (8, 4, 2, 1):
        if pad:
            a(f"s_nop {pad}")
        for r in regs:
            a(f"{op}_dpp v{r}, v{r}, v{r} row_ror:{ror} row_mask:0xf bank_mask:0xf")
    for sw in ("v_permlane16_swap_b32", "v_permlane32_swap_b32"):
        for r, t in zip(regs, tmps):
            a(f"v_mov_b32 v{t}, v{r}")
        a("s_nop 1")
        for r, t in zip(regs, tmps):
            a(f"{sw} v{r}, v{t}")
        a("s_nop 1")
        for r, t in zip(regs, tmps):
            a(f"{op} v{r}, v{r}, v{t}")


def bf16r(a, d, s):
    a(f"v_cvt_pk_bf16_f32 v{d}, v{s}, v{s}")
    a(f"v_and_b32 v{d}, 0xffff0000, v{d}")


def layernorm(a, xs, f, t):
    n = len(xs)
    for x, fb in zip(xs, f):
        for k in range(4):
            a(f"v_lshlrev_b32 v{fb+2*k}, 16, v{x+k}")
            a(f"v_and_b32 v{fb+2*k+1}, 0xffff0000, v{x+k}")
    for fb, tb in zip(f, t):
        a(f"v_add_f32 v{tb}, v{fb}, v{fb+1}")
        a(f"v_add_f32 v{tb+1}, v{fb+2}, v{fb+3}")
        a(f"v_add_f32 v{tb+2}, v{fb+4}, v{fb+5}")
        a(f"v_add_f32 v{tb+3}, v{fb+6}, v{fb+7}")
        a(f"v_add_f32 v{tb}, v{tb}, v{tb+1}")
        a(f"v_add_f32 v{tb+2}, v{tb+2}, v{tb+3}")
        a(f"v_add_f32 v{tb}, v{tb}, v{tb+2}")
    allreduce(a, "v_add_f32", [tb for tb in t], [tb + 1 for tb in t])
    for fb, tb in zip(f, t):
        a(f"v_mul_f32 v{tb}, 0x3b000000, v{tb}")
        a(f"v_sub_f32 v{tb+2}, v{fb}, v{tb}")
        a(f"v_mul_f32 v{tb+1}, v{tb+2}, v{tb+2}")
        for e in range(1, 8):
            a(f"v_sub_f32 v{tb+2}, v{fb+e}, v{tb}")
            a(f"v_fmac_f32 v{tb+1}, v{tb+2}, v{tb+2}")
    allreduce(a, "v_add_f32", [tb + 1 for tb in t], [tb + 2 for tb in t])
    for fb, tb in zip(f, t):
        a(f"v_mul_f32 v{tb+1}, 0x3b000000, v{tb+1}")
        bf16r(a, tb + 1, tb + 1)
        a(f"v_add_f32 v{tb+1}, {hex(EPS)}, v{tb+1}")
        bf16r(a, tb + 1, tb + 1)
        a(f"v_sqrt_f32 v{tb+1}, v{tb+1}")
        bf16r(a, tb, tb)
        bf16r(a, tb + 1, tb + 1)
        a(f"v_rcp_f32 v{tb+2}, v{tb+1}")
        for e in range(8):
            a(f"v_sub_f32 v{fb+e}, v{fb+e}, v{tb}")
        for e in range(8):
            bf16r(a, fb + e, fb + e)
        for e in range(8):
            a(f"v_mul_f32 v{tb+3}, v{fb+e}, v{tb+2}")
            a(f"v_fma_f32 v{fb+e}, -v{tb+3}, v{tb+1}, v{fb+e}")
            a(f"v_fma_f32 v{fb+e}, v{fb+e}, v{tb+2}, v{tb+3}")


def gen(W=20, spin=1 << 18, debug=False, wq_flags="", wo_flags="nt", ffn_flags="nt", prof=False, no_ffn=False, no_wo=False, no_wq=False, ldprio=3, dn_th=104, W2=None, n2=120, Wf=None, stag=True):
    a = A()
    nst = [0]

    def stamp():
        if not prof:
            return
        i = nst[0]
        nst[0] += 1
        assert i < 18
        a(f"s_memrealtime s[{64+2*i}:{65+2*i}]")
        a("s_waitcnt lgkmcnt(0)")

    def dump_stamps(vt, va):
        if not prof:
            return
        a(f"v_mov_b32 v{vt}, 0")
        for i in range(nst[0]):
            a(f"v_writelane_b32 v{vt}, s{64+2*i}, {i}")
        a(f"""
s_lshl_b32 s62, s2, 3
s_add_u32 s62, s62, s3
s_lshl_b32 s62, s62, 8
s_add_u32 s62, s62, 0x200000
v_lshl_add_u32 v{va}, v0, 2, s62
global_store_dword v{va}, v{vt}, s[26:27]
""")

    a(f"""
.amdgcn_target "amdgcn-amd-amdhsa--gfx950"
.text
.globl {NAME}
.p2align 8
.type {NAME},@function
{NAME}:
s_cmp_ge_u32 s2, 256
s_cbranch_scc1 L_exit
s_load_dwordx16 s[4:19], s[0:1], 0
s_load_dwordx8 s[20:27], s[0:1], 64
v_lshrrev_b32 v1, 6, v0
v_and_b32 v0, 63, v0
v_readfirstlane_b32 s3, v1
v_and_b32 v1, 7, v0
v_lshlrev_b32 v1, 8, v1
v_add_u32 v1, {FL}, v1
v_mov_b32 v2, 0
ds_write_b32 v1, v2
v_lshrrev_b32 v2, 4, v0
v_and_b32 v3, 15, v0
s_and_b32 s28, s2, 7
s_lshr_b32 s29, s2, 3
s_and_b32 s30, s29, 1
s_bfe_u32 s31, s29, 0x20001
s_lshl_b32 s31, s31, 3
s_or_b32 s31, s31, s28
s_lshr_b32 s32, s29, 3
s_lshl1_add_u32 s33, s31, s30
s_mov_b32 s34, {spin}
s_cmp_eq_u32 s3, 1
s_cbranch_scc1 L_side
s_cmp_gt_u32 s3, 1
s_cbranch_scc1 L_main
""")
    a(f"s_setprio {ldprio}")
    for t in range(4):
        a(f"v_add_u32 v{4+t}, {4*t}, v2")
        a(f"v_xor_b32 v{4+t}, v{4+t}, v3")
        a(f"v_lshlrev_b32 v{4+t}, 4, v{4+t}")
        a(f"v_lshl_add_u32 v{4+t}, v2, 8, v{4+t}")
    a(f"""
v_lshlrev_b32 v8, 4, v0
v_lshlrev_b32 v9, 2, v0
v_add_u32 v9, {FL_L}, v9
v_and_b32 v10, 3, v0
v_lshlrev_b32 v10, 8, v10
v_add_u32 v10, {FL_F}, v10
v_mov_b32 v11, 0
s_lshl_b32 s44, s32, 6
s_add_u32 s44, s44, s33
s_lshl_b32 s44, s44, 20
s_mov_b32 s45, 0
s_mov_b32 s46, 0
s_mov_b32 s47, s44
s_mov_b32 s38, 0x10000000
s_mov_b32 s39, 0x20000
s_mov_b32 s42, 0x10000000
s_mov_b32 s43, 0x20000
s_waitcnt lgkmcnt(0)
s_barrier
s_mov_b32 s36, s6
s_mov_b32 s37, s7
s_mov_b32 s40, s8
s_mov_b32 s41, s9
""")
    spins = []

    def ld_block(tag, srd, voffs, nend, Wn):
        t_pub = (Wn - 1) % 16
        k_pub = (Wn - 1) >> 4
        spins.append(tag)
        a(f"""
L_ld_{tag}:
{"s_memrealtime s[60:61]" if prof else ""}
s_waitcnt lgkmcnt(0)
{"s_lshr_b32 m0, s45, 1" if prof else ""}
{"v_writelane_b32 v20, s60, m0" if prof else ""}
s_and_b32 s48, s45, 3
s_sub_i32 s50, s45, 4
v_readlane_b32 s49, v11, s48
s_ashr_i32 s50, s50, 2
s_sub_i32 s52, s45, {k_pub}
s_max_i32 s51, s51, s52
s_cmp_ge_i32 s49, s50
s_cbranch_scc0 L_ldspin_{tag}
L_ldgo_{tag}:
""")
        for q in range(4):
            a("s_mov_b32 m0, s46")
            for t in range(4):
                i = 4 * q + t
                a(f"s_waitcnt vmcnt({Wn-1})")
                a(f"buffer_load_dwordx4 v{voffs[t]}, s[{srd}:{srd+3}], s47 offen offset:{t*1024} nt lds")
                if i == t_pub:
                    a("v_mov_b32 v12, s51")
                    a("ds_write_b32 v9, v12")
                if i == 10:
                    a("ds_read_b32 v11, v10")
            a("s_add_u32 s47, s47, 0x1000")
            a("s_add_u32 s46, s46, 0x1000")
        a(f"""
s_and_b32 s46, s46, 0x1ffff
s_add_u32 s45, s45, 1
s_cmp_lt_u32 s45, {nend}
s_cbranch_scc1 L_ld_{tag}
""")

    def ld_spin(tag):
        a(f"""
L_ldspin_{tag}:
s_sleep 1
ds_read_b32 v11, v10
s_waitcnt lgkmcnt(0)
v_readlane_b32 s49, v11, s48
s_sub_u32 s34, s34, 1
s_cbranch_scc1 L_exit
s_cmp_ge_i32 s49, s50
s_cbranch_scc1 L_ldgo_{tag}
s_branch L_ldspin_{tag}
""")

    KV, VV = [4, 5, 6, 7], [8, 8, 8, 8]
    a("s_mov_b32 s51, 0")
    if Wf and Wf != W:
        a(f"s_cmp_lt_u32 s2, {NF}")
        a("s_cbranch_scc1 L_ld_fk")
    ld_block("k", 36, KV, 64, W)
    a("s_mov_b32 s47, s44")
    Wl = W
    if W2 and W2 != W:
        ld_block("v", 40, VV, n2, W)
        ld_block("v2", 40, VV, 128, W2)
        Wl = W2
    else:
        ld_block("v", 40, VV, 128, W)
    a("L_drain:")
    for nb in range(124, 128):
        a(f"s_waitcnt vmcnt({16*(127-nb)})")
        a(f"s_max_i32 s51, s51, {nb+1}")
        a(f"v_mov_b32 v12, s51")
        a("ds_write_b32 v9, v12")
    a("s_waitcnt lgkmcnt(0)")
    if prof:
        a(f"""
s_memrealtime s[60:61]
s_waitcnt lgkmcnt(0)
v_mov_b32 v21, s60
v_mov_b32 v22, s34
s_lshl_b32 s62, s2, 3
s_lshl_b32 s62, s62, 8
s_add_u32 s62, s62, 0x200000
v_lshl_add_u32 v23, v0, 2, s62
global_store_dword v23, v20, s[26:27]
global_store_dword v23, v21, s[26:27] offset:1536
global_store_dword v23, v22, s[26:27] offset:1792
""")
    a("s_endpgm")
    if Wf and Wf != W:
        ld_block("fk", 36, KV, 64, Wf)
        a("s_mov_b32 s47, s44")
        ld_block("fv", 40, VV, 128, Wf)
        a("s_branch L_drain")
    for tag in spins:
        ld_spin(tag)

    a(f"""
L_main:
s_setprio 1
s_sub_u32 s35, s3, 2
v_lshlrev_b32 v61, 4, v0
s_lshl_b32 s36, s32, 10
v_add_u32 v61, s36, v61
v_lshlrev_b32 v60, 13, v2
v_lshl_add_u32 v60, v3, 4, v60
s_lshl_b32 s44, s35, 20
s_lshl_b32 s45, s31, 8
s_add_u32 s44, s44, s45
s_mov_b32 s42, {0 if no_wq else 0x400000}
s_mov_b32 s43, 0x20000
s_waitcnt lgkmcnt(0)
s_barrier
global_load_dwordx4 v[96:99], v61, s[4:5]
s_mov_b32 s40, s10
s_mov_b32 s41, s11
""")
    nst[0] = 0
    stamp()
    for rg in range(32):
        a(f"buffer_load_dwordx4 v[{128+4*rg}:{131+4*rg}], v60, s[40:43], s44 offen {wq_flags}")
        if rg < 31:
            a("s_add_u32 s44, s44, 0x8000")
    a("""
v_and_b32 v8, 1, v3
v_cmp_eq_u32 vcc, 1, v8
v_mov_b32 v9, 0xffff
v_mov_b32 v10, 0xffff0000
v_bfe_u32 v8, v3, 1, 2
v_cndmask_b32 v9, v9, v10, vcc
""")
    for jj in range(4):
        a(f"v_cmp_eq_u32 vcc, {jj}, v8")
        a("s_nop 1")
        a(f"v_cndmask_b32 v{4+jj}, 0, v9, vcc")
    for kk in range(4):
        a(f"v_add_u32 v{52+kk}, {4*kk}, v2")
        a(f"v_xor_b32 v{52+kk}, v{52+kk}, v3")
        a(f"v_lshlrev_b32 v{52+kk}, 4, v{52+kk}")
        a(f"v_lshl_add_u32 v{52+kk}, v3, 8, v{52+kk}")
    a("v_lshlrev_b32 v60, 12, v2")
    a("v_lshl_add_u32 v60, v3, 4, v60")
    stamp()
    a("s_waitcnt vmcnt(32)")
    stamp()
    layernorm(a, [96], [100], [108])
    for g in range(4):
        a(f"v_cvt_pk_bf16_f32 v{112+2*g}, v{100+g}, v{100+g}")
        a(f"v_cvt_pk_bf16_f32 v{113+2*g}, v{104+g}, v{104+g}")
    a(f"v_lshlrev_b32 v61, 3, v0")
    a(f"v_add_u32 v61, {XT}, v61")
    for g in range(4):
        a(f"ds_write_b64 v61, v[{112+2*g}:{113+2*g}] offset:{g*512}")
    a(f"""
s_lshl_b32 s36, s35, 7
s_add_u32 s36, s36, {XT}
v_lshlrev_b32 v61, 9, v2
v_add_u32 v61, s36, v61
s_waitcnt lgkmcnt(0)
""")
    for i in range(8):
        a(f"ds_read_b128 v[{64+4*i}:{67+4*i}], v61 offset:{i*16}")
    a("s_waitcnt lgkmcnt(0)")

    def gemv32(xbase, wbase, acc, waits=None):
        def prep(rg):
            s = 8 + 4 * (rg & 1)
            for jj in range(4):
                a(f"v_and_b32 v{s+jj}, v{xbase+rg}, v{4+jj}")
        prep(0)
        for rg in range(32):
            if rg + 1 < 32:
                prep(rg + 1)
            else:
                a("s_nop 1")
            if waits:
                a(waits(rg))
            s = 8 + 4 * (rg & 1)
            c = "0" if rg == 0 else f"v[{acc}:{acc+3}]"
            a(f"v_mfma_f32_16x16x32_bf16 v[{acc}:{acc+3}], v[{s}:{s+3}], v[{wbase+4*rg}:{wbase+4*rg+3}], {c}")

    stamp()
    gemv32(64, 128, 16, waits=lambda rg: f"s_waitcnt vmcnt({31-rg})")
    stamp()
    a(f"""
s_lshl_b32 s36, s35, 9
s_add_u32 s36, s36, {QP}
v_and_b32 v63, 1, v2
v_lshlrev_b32 v63, 4, v63
v_lshl_add_u32 v63, v3, 5, v63
v_add_u32 v63, s36, v63
v_mov_b32 v61, {FL_Q}
v_mov_b32 v62, 1
s_nop 3
ds_write_b128 v63, v[16:19]
s_waitcnt lgkmcnt(0)
s_mov_b64 exec, 1
ds_add_u32 v61, v62
s_mov_b64 exec, -1
L_qwait:
ds_read_b32 v62, v61
s_waitcnt lgkmcnt(0)
v_readfirstlane_b32 s36, v62
s_sub_u32 s34, s34, 1
s_cbranch_scc1 L_exit
s_cmp_lt_u32 s36, 4
s_cbranch_scc1 L_qwait
v_lshlrev_b32 v61, 3, v0
v_add_u32 v61, {QP}, v61
""")
    for p in range(4):
        a(f"ds_read_b64 v[{64+2*p}:{65+2*p}], v61 offset:{p*512}")
    a(f"""
s_lshl_b32 s36, s35, 8
s_add_u32 s36, s36, {QT}
v_lshl_add_u32 v61, v0, 2, s36
v_lshl_add_u32 v62, v2, 4, s36
s_waitcnt lgkmcnt(0)
v_add_f32 v64, v64, v66
v_add_f32 v65, v65, v67
v_add_f32 v68, v68, v70
v_add_f32 v69, v69, v71
v_add_f32 v64, v64, v68
v_add_f32 v65, v65, v69
v_cvt_pk_bf16_f32 v64, v64, v65
ds_write_b32 v61, v64
s_waitcnt lgkmcnt(0)
""")
    for kk in range(4):
        a(f"ds_read_b128 v[{20+4*kk}:{23+4*kk}], v62 offset:{kk*64}")
    if debug:
        a(f"""
s_cmp_lg_u32 s35, 0
s_cbranch_scc1 L_dbgq
s_lshl_b32 s36, s2, 8
s_add_u32 s36, s36, 0x100000
v_lshl_add_u32 v61, v0, 2, s36
global_store_dword v61, v64, s[26:27]
L_dbgq:
""")
    a(f"""
s_mov_b32 s36, s35
s_mov_b32 s37, 0
v_mov_b32 v62, 0xff800000
v_mov_b32 v61, {FL_L}
s_lshl_b32 s38, s35, 8
s_add_u32 s38, s38, {FL_F}
v_lshl_add_u32 v1, v0, 2, s38
s_lshl_b32 s38, s35, 12
s_add_u32 s38, s38, {ST}
v_lshl_add_u32 v16, v0, 2, s38
v_mov_b32 v17, v16
s_mov_b32 s40, s12
s_mov_b32 s41, s13
s_mov_b32 s42, {0 if no_wo else 0x400000}
s_lshl_b32 s44, s31, 17
s_lshl_b32 s45, s35, 8
s_add_u32 s44, s44, s45
v_lshlrev_b32 v18, 10, v2
v_lshl_add_u32 v18, v3, 4, v18
""")

    def wait_block(tag):
        a(f"""
L_w_{tag}:
ds_read_b32 v19, v61
s_waitcnt lgkmcnt(0)
v_readfirstlane_b32 s38, v19
s_cmp_gt_i32 s38, s36
s_cbranch_scc1 L_go_{tag}
s_sub_u32 s34, s34, 1
s_cbranch_scc1 L_exit
s_sleep 1
s_branch L_w_{tag}
L_go_{tag}:
s_and_b32 s38, s36, 7
s_lshl_b32 s38, s38, 14
s_add_u32 s37, s37, 1
""")

    for part in range(4):
        stamp()
        for i in range(8):
            rg = part * 8 + i
            a(f"buffer_load_dwordx4 v[{128+4*rg}:{131+4*rg}], v18, s[40:43], s44 offen {wo_flags}")
            a("s_add_u32 s44, s44, 0x1000")
        tag = f"k{part}"
        wait_block(tag)
        for kk in range(4):
            a(f"v_or_b32 v{56+kk}, s38, v{52+kk}")
        a("v_mov_b32 v19, s37")
        for gp in range(4):
            for kk in range(4):
                r = 64 + 4 * (4 * gp + kk)
                a(f"ds_read_b128 v[{r}:{r+3}], v{56+kk} offset:{gp*4096}")
        a("ds_write_b32 v1, v19")
        for gp in range(4):
            for kk in range(4):
                i = 4 * gp + kk
                r = 64 + 4 * i
                a(f"s_waitcnt lgkmcnt({min(15, 16-i)})")
                c = "0" if kk == 0 else f"v[{36+4*gp}:{39+4*gp}]"
                a(f"v_mfma_f32_16x16x32_bf16 v[{36+4*gp}:{39+4*gp}], v[{20+4*kk}:{23+4*kk}], v[{r}:{r+3}], {c}")
        a(f"""
v_mov_b32 v19, v36
v_mov_b32_dpp v19, v40 quad_perm:[0,1,2,3] row_mask:0x2 bank_mask:0xf
v_mov_b32_dpp v19, v44 quad_perm:[0,1,2,3] row_mask:0x4 bank_mask:0xf
s_add_u32 s36, s36, 4
s_nop 4
v_mov_b32_dpp v19, v48 quad_perm:[0,1,2,3] row_mask:0x8 bank_mask:0xf
""")
        bf16r(a, 19, 19)
        a(f"v_mul_f32 v19, {hex(SCALE)}, v19")
        bf16r(a, 19, 19)
        a(f"""
v_max_f32 v62, v62, v19
ds_write_b32 v17, v19
v_add_u32 v17, 0x100, v17
s_cmp_lt_u32 s37, {4*part+4}
s_cbranch_scc1 L_w_{tag}
""")
    stamp()
    for i in range(16):
        a(f"ds_read_b32 v{64+i}, v16 offset:{i*256}")
    allreduce(a, "v_max_f32", [62], [19])
    a(f"""
s_mov_b32 s38, {hex(LOG2E)}
v_mov_b32 v59, 0
s_waitcnt lgkmcnt(0)
""")
    for i in range(16):
        a(f"v_sub_f32 v{64+i}, v{64+i}, v62")
    for i in range(16):
        a(f"v_mul_f32 v{64+i}, s38, v{64+i}")
    for i in range(16):
        a(f"v_exp_f32 v{64+i}, v{64+i}")
    a("s_nop 0")
    for i in range(16):
        a(f"v_add_f32 v59, v59, v{64+i}")
        a(f"v_cvt_pk_bf16_f32 v{64+i}, v{64+i}, v{64+i}")
    for i in range(16):
        a(f"ds_write_b32 v16, v{64+i} offset:{i*256}")
    allreduce(a, "v_add_f32", [59], [19])
    a(f"""
v_mov_b32 v58, v62
s_lshl_b32 s39, s35, 3
s_add_u32 s39, s39, {ML}
v_mov_b32 v19, s39
v_mov_b32 v56, {FL_MLC}
v_mov_b32 v57, 1
s_mov_b64 exec, 1
ds_write_b64 v19, v[58:59]
ds_add_u32 v56, v57
s_mov_b64 exec, -1
v_mov_b32 v17, v16
v_mov_b32 v36, 0
v_mov_b32 v37, 0
v_mov_b32 v38, 0
v_mov_b32 v39, 0
""")
    stamp()
    wait_block("v")
    a("v_or_b32 v56, s38, v60")
    a("v_mov_b32 v19, s37")
    a("ds_read_b32 v40, v17")
    for t in range(16):
        a(f"ds_read_b128 v[{64+4*t}:{67+4*t}], v56 offset:{t*256}")
    a("ds_write_b32 v1, v19")
    a("v_add_u32 v17, 0x100, v17")
    a("s_add_u32 s36, s36, 4")
    a("s_waitcnt lgkmcnt(15)")

    def prepv(t):
        s = 8 + 4 * (t & 1)
        for jj in range(4):
            a(f"v_and_b32_dpp v{s+jj}, v40, v{4+jj} row_newbcast:{t} row_mask:0xf bank_mask:0xf")
    prepv(0)
    for t in range(16):
        if t + 1 < 16:
            prepv(t + 1)
        else:
            a("s_nop 1")
        a(f"s_waitcnt lgkmcnt({min(15, 16-t)})")
        s = 8 + 4 * (t & 1)
        a(f"v_mfma_f32_16x16x32_bf16 v[36:39], v[{s}:{s+3}], v[{64+4*t}:{67+4*t}], v[36:39]")
    a(f"""
s_cmp_lg_u32 s37, 24
s_cbranch_scc1 L_nocw
L_mlwait:
v_mov_b32 v56, {FL_MLC}
ds_read_b32 v19, v56
s_waitcnt lgkmcnt(0)
v_readfirstlane_b32 s38, v19
s_sub_u32 s34, s34, 1
s_cbranch_scc1 L_exit
s_cmp_lt_u32 s38, 4
s_cbranch_scc1 L_mlwait
v_and_b32 v56, 3, v0
v_lshlrev_b32 v56, 3, v56
v_add_u32 v56, {ML}, v56
ds_read_b64 v[44:45], v56
s_mov_b32 s38, {hex(LOG2E)}
s_waitcnt lgkmcnt(0)
v_max_f32_dpp v42, v44, v44 quad_perm:[1,0,3,2] row_mask:0xf bank_mask:0xf
s_nop 1
v_max_f32_dpp v42, v42, v42 quad_perm:[2,3,0,1] row_mask:0xf bank_mask:0xf
v_sub_f32 v44, v44, v42
v_mul_f32 v44, s38, v44
v_exp_f32 v44, v44
v_sub_f32 v41, v62, v42
v_mul_f32 v43, v44, v45
v_mul_f32 v41, s38, v41
v_exp_f32 v41, v41
v_add_f32_dpp v43, v43, v43 quad_perm:[1,0,3,2] row_mask:0xf bank_mask:0xf
s_nop 1
v_add_f32_dpp v43, v43, v43 quad_perm:[2,3,0,1] row_mask:0xf bank_mask:0xf
v_rcp_f32 v44, v43
s_nop 0
v_mul_f32 v41, v41, v44
v_min_u32 v42, -2, v42
v_min_u32 v43, -2, v43
v_mov_b32 v56, {FL_MLW}
v_mov_b32 v19, 1
s_mov_b64 exec, 1
ds_write_b64 v56, v[42:43] offset:128
ds_write_b32 v56, v19
s_mov_b64 exec, -1
L_nocw:
s_cmp_lt_u32 s37, 32
s_cbranch_scc1 L_w_v
""")
    stamp()
    a(f"""
s_lshl_b32 s36, s35, 10
s_add_u32 s36, s36, {QT}
v_lshlrev_b32 v61, 3, v0
v_add_u32 v61, {QP}, v61
v_and_b32 v56, 1, v0
v_lshlrev_b32 v56, 8, v56
v_lshrrev_b32 v57, 1, v0
v_mul_f32 v36, v36, v41
v_mul_f32 v37, v37, v41
v_mul_f32 v38, v38, v41
v_mul_f32 v39, v39, v41
ds_write_b128 v63, v[36:39]
v_lshl_add_u32 v56, v57, 2, v56
v_add_u32 v56, s36, v56
v_lshrrev_b32 v57, 3, v3
v_lshlrev_b32 v57, 9, v57
v_lshl_add_u32 v57, v2, 7, v57
v_add_u32 v57, s36, v57
s_waitcnt lgkmcnt(0)
s_barrier
""")
    for p in range(4):
        a(f"ds_read_b64 v[{64+2*p}:{65+2*p}], v61 offset:{p*512}")
    stamp()
    a(f"""
s_lshl_b32 s36, s32, 6
s_add_u32 s36, s36, s33
s_lshl_b32 s36, s36, 11
s_lshl_b32 s37, s35, 9
s_add_u32 s37, s36, s37
v_and_b32 v58, 1, v2
v_lshlrev_b32 v58, 4, v58
v_lshl_add_u32 v58, v3, 5, v58
v_add_u32 v58, s37, v58
s_waitcnt lgkmcnt(0)
v_add_f32 v64, v64, v66
v_add_f32 v65, v65, v67
v_add_f32 v68, v68, v70
v_add_f32 v69, v69, v71
v_add_f32 v64, v64, v68
v_add_f32 v65, v65, v69
v_cvt_pk_bf16_f32 v66, v64, v64
v_cvt_pk_bf16_f32 v67, v65, v65
ds_write_b32 v56, v66
ds_write_b32 v56, v67 offset:128
v_and_b32 v68, 0xffff0000, v66
v_and_b32 v69, 0xffff0000, v67
v_sub_f32 v68, v64, v68
v_sub_f32 v69, v65, v69
v_cvt_pk_bf16_f32 v68, v68, v68
v_cvt_pk_bf16_f32 v69, v69, v69
ds_write_b32 v56, v68 offset:512
ds_write_b32 v56, v69 offset:640
""")
    if debug:
        a(f"""
s_cmp_lg_u32 s35, 0
s_cbranch_scc1 L_dbgo
s_lshl_b32 s36, s2, 9
s_add_u32 s36, s36, 0x120000
v_lshl_add_u32 v61, v0, 3, s36
global_store_dwordx2 v61, v[64:65], s[26:27]
s_nop 1
L_dbgo:
""")
    a("s_waitcnt lgkmcnt(0)")
    for i in range(8):
        a(f"ds_read_b128 v[{64+4*i}:{67+4*i}], v57 offset:{i*16}")
    a("s_waitcnt vmcnt(0) lgkmcnt(0)")
    gemv32(64, 128, 16)
    a(f"""
s_nop 7
v_mov_b32 v20, v16
v_mov_b32 v21, v17
v_mov_b32 v22, v18
v_mov_b32 v23, v19
s_nop 1
v_permlane32_swap_b32 v16, v20
v_permlane32_swap_b32 v17, v21
v_permlane32_swap_b32 v18, v22
v_permlane32_swap_b32 v19, v23
s_nop 1
v_add_f32 v16, v16, v20
v_add_f32 v17, v17, v21
v_add_f32 v18, v18, v22
v_add_f32 v19, v19, v23
v_min_u32 v16, -2, v16
v_min_u32 v17, -2, v17
v_min_u32 v18, -2, v18
v_min_u32 v19, -2, v19
s_mov_b32 exec_hi, 0
global_store_dwordx4 v58, v[16:19], s[26:27] sc1
s_mov_b64 exec, -1
""")
    stamp()
    dump_stamps(64, 65)
    a("s_endpgm")
    nst[0] = 0

    def wait_L(tag, sreg_or_imm, slp):
        a(f"""
v_mov_b32 v12, {FL_L}
L_pw_{tag}:
ds_read_b32 v13, v12
s_waitcnt lgkmcnt(0)
v_readfirstlane_b32 s36, v13
s_cmp_ge_i32 s36, {sreg_or_imm}
s_cbranch_scc1 L_pg_{tag}
s_sub_u32 s34, s34, 1
s_cbranch_scc1 L_exit
s_sleep {slp}
s_branch L_pw_{tag}
L_pg_{tag}:
""")

    a(f"""
L_side:
s_lshl_b32 s36, s32, 6
s_add_u32 s36, s36, s33
s_lshl_b32 s37, s36, 11
v_lshlrev_b32 v1, 4, v0
v_add_u32 v60, s37, v1
s_lshl_b32 s37, s36, 3
s_add_u32 s37, s37, {MLB}
v_mov_b32 v59, s37
s_lshl_b32 s37, s2, 13
s_add_u32 s37, s37, {DNB}
v_add_u32 v58, s37, v1
v_add_u32 v57, 0x1000, v58
v_mov_b32 v8, -1
v_mov_b32 v9, -1
v_mov_b32 v10, -1
v_mov_b32 v11, -1
v_mov_b32 v14, s2
v_mov_b32 v15, 1
s_lshr_b32 s37, s2, 3
s_add_u32 s37, s37, 2
s_waitcnt lgkmcnt(0)
s_barrier
""")
    if stag:
        wait_L("c", "s37", 8)
    a(f"""
global_store_dwordx4 v60, v[8:11], s[26:27] sc1
global_store_dwordx4 v60, v[8:11], s[26:27] offset:1024 sc1
s_cmp_ge_u32 s2, {NF}
s_cbranch_scc1 L_clr1
""")
    for k in range(4):
        a(f"global_store_dwordx4 v58, v[8:11], s[26:27] offset:{k*1024} sc1")
        a(f"global_store_dwordx4 v57, v[8:11], s[26:27] offset:{k*1024} sc1")
    a(f"""
L_clr1:
s_mov_b64 exec, 1
global_store_dwordx2 v59, v[8:9], s[26:27] sc1
s_waitcnt vmcnt(0)
global_store_byte v14, v15, s[24:25] sc1
s_mov_b64 exec, -1
""")
    stamp()
    a(f"""
s_cmp_ge_u32 s2, {NF}
s_cbranch_scc1 L_noffn
""")
    for b in range(4):
        a(f"global_load_dwordx4 v[{16+4*b}:{19+4*b}], v1, s[4:5] offset:{b*1024}")
    a(f"""
s_mov_b32 s36, s16
s_mov_b32 s37, s17
s_mov_b32 s38, {0 if no_ffn else 512*3584}
s_mov_b32 s39, 0x20000
s_mov_b32 s40, s18
s_mov_b32 s41, s19
s_mov_b32 s42, {0 if no_ffn else 512*3584}
s_mov_b32 s43, 0x20000
s_mov_b32 s44, s20
s_mov_b32 s45, s21
s_mov_b32 s46, {0 if no_ffn else 1792*1024}
s_mov_b32 s47, 0x20000
s_movk_i32 s48, 3584
v_mul_lo_u32 v61, v2, s48
v_lshl_add_u32 v61, v3, 4, v61
s_lshl_b32 s48, s2, 8
""")
    a("""
v_and_b32 v8, 1, v3
v_cmp_eq_u32 vcc, 1, v8
v_mov_b32 v9, 0xffff
v_mov_b32 v10, 0xffff0000
v_bfe_u32 v8, v3, 1, 2
v_cndmask_b32 v9, v9, v10, vcc
""")
    for jj in range(4):
        a(f"v_cmp_eq_u32 vcc, {jj}, v8")
        a("s_nop 1")
        a(f"v_cndmask_b32 v{4+jj}, 0, v9, vcc")

    def ffn1_loads(hb):
        for i in range(8):
            r = 128 + 64 * hb + 8 * i
            a(f"buffer_load_dwordx4 v[{r}:{r+3}], v61, s[36:39], s48 offen {ffn_flags}")
            a(f"buffer_load_dwordx4 v[{r+4}:{r+7}], v61, s[40:43], s48 offen {ffn_flags}")
            a(f"s_add_u32 s48, s48, {4*3584}")
    ffn1_loads(0)
    ffn1_loads(1)
    a("s_waitcnt vmcnt(32)")
    layernorm(a, [16, 20, 24, 28], [64, 72, 80, 88], [96, 100, 104, 108])
    a(f"v_lshlrev_b32 v62, 3, v0")
    a(f"v_add_u32 v62, {FT}, v62")
    for b in range(4):
        for g in range(4):
            a(f"v_cvt_pk_bf16_f32 v{112+2*g}, v{64+8*b+g}, v{64+8*b+g}")
            a(f"v_cvt_pk_bf16_f32 v{113+2*g}, v{68+8*b+g}, v{68+8*b+g}")
        for g in range(4):
            a(f"ds_write_b64 v62, v[{112+2*g}:{113+2*g}] offset:{b*2048+g*512}")
    a(f"""
v_lshrrev_b32 v62, 3, v3
v_lshlrev_b32 v62, 11, v62
v_lshl_add_u32 v62, v2, 9, v62
v_add_u32 v62, {FT}, v62
""")
    for r in range(32, 48):
        a(f"v_mov_b32 v{r}, 0")
    a("s_mov_b32 s49, 0")
    a("s_waitcnt lgkmcnt(0)")
    a("L_ffn1:")
    for hb in range(2):
        for m in range(2):
            for i2 in range(2):
                a(f"ds_read_b128 v[{64+8*m+4*i2}:{67+8*m+4*i2}], v62 offset:{m*4096+hb*32+i2*16}")
        a("s_waitcnt vmcnt(16) lgkmcnt(0)")
        for i in range(8):
            s = 8 + 8 * (i & 1)
            for m in range(2):
                for jj in range(4):
                    a(f"v_and_b32 v{s+4*m+jj}, v{64+8*m+i}, v{4+jj}")
            a("s_nop 1")
            r = 128 + 64 * hb + 8 * i
            for m in range(2):
                a(f"v_mfma_f32_16x16x32_bf16 v[{32+4*m}:{35+4*m}], v[{s+4*m}:{s+4*m+3}], v[{r}:{r+3}], v[{32+4*m}:{35+4*m}]")
                a(f"v_mfma_f32_16x16x32_bf16 v[{40+4*m}:{43+4*m}], v[{s+4*m}:{s+4*m+3}], v[{r+4}:{r+7}], v[{40+4*m}:{43+4*m}]")
        a("s_nop 7")
        ffn1_loads(hb)
    a(f"""
v_add_u32 v62, 64, v62
s_add_u32 s49, s49, 1
s_cmp_lt_u32 s49, 8
s_cbranch_scc1 L_ffn1
s_waitcnt vmcnt(0)
""")
    stamp()
    a("""
v_lshlrev_b32 v61, 10, v2
v_lshl_add_u32 v61, v3, 4, v61
s_lshl_b32 s48, s2, 17
""")

    def ffn2_loads(hb):
        for i in range(4):
            for cb in range(4):
                r = 128 + 64 * hb + 16 * i + 4 * cb
                a(f"buffer_load_dwordx4 v[{r}:{r+3}], v61, s[44:47], s48 offen offset:{cb*256} {ffn_flags}")
            a("s_add_u32 s48, s48, 0x1000")
    ffn2_loads(0)
    ffn2_loads(1)
    a(f"s_mov_b32 s50, {hex(LOG2E ^ 0x80000000)}")
    for k in range(8):
        bf16r(a, 32 + k, 32 + k)
        bf16r(a, 40 + k, 40 + k)
    for k in range(8):
        a(f"v_mul_f32 v{64+k}, s50, v{32+k}")
    for k in range(8):
        a(f"v_exp_f32 v{64+k}, v{64+k}")
    a("s_nop 0")
    for k in range(8):
        a(f"v_add_f32 v{64+k}, 1.0, v{64+k}")
    for k in range(8):
        a(f"v_rcp_f32 v{64+k}, v{64+k}")
    a("s_nop 0")
    for k in range(8):
        a(f"v_mul_f32 v{64+k}, v{64+k}, v{32+k}")
    for k in range(8):
        bf16r(a, 64 + k, 64 + k)
    for k in range(8):
        a(f"v_mul_f32 v{64+k}, v{64+k}, v{40+k}")
    for k in range(8):
        a(f"v_cvt_pk_bf16_f32 v{64+k}, v{64+k}, v{64+k}")
    a(f"""
v_lshrrev_b32 v62, 1, v2
v_lshlrev_b32 v62, 9, v62
v_lshl_add_u32 v62, v3, 3, v62
v_and_b32 v63, 1, v2
v_lshl_add_u32 v62, v63, 2, v62
v_add_u32 v62, {FT}, v62
""")
    for m in range(2):
        for r in range(4):
            a(f"ds_write_b32 v62, v{64+4*m+r} offset:{m*1024+r*128}")
    a(f"""
v_lshrrev_b32 v62, 3, v3
v_lshlrev_b32 v62, 9, v62
v_lshl_add_u32 v62, v2, 7, v62
v_add_u32 v62, {FT}, v62
""")
    for r in range(80, 112):
        a(f"v_mov_b32 v{r}, 0")
    a("s_mov_b32 s49, 0")
    a("s_waitcnt lgkmcnt(0)")
    a("L_ffn2:")
    for hb in range(2):
        for m in range(2):
            a(f"ds_read_b128 v[{64+4*m}:{67+4*m}], v62 offset:{m*1024+hb*16}")
        a("s_waitcnt vmcnt(16) lgkmcnt(0)")
        for i in range(4):
            s = 8 + 8 * (i & 1)
            for m in range(2):
                for jj in range(4):
                    a(f"v_and_b32 v{s+4*m+jj}, v{64+4*m+i}, v{4+jj}")
            a("s_nop 1")
            for cb in range(4):
                r = 128 + 64 * hb + 16 * i + 4 * cb
                for m in range(2):
                    ac = 80 + 8 * cb + 4 * m
                    a(f"v_mfma_f32_16x16x32_bf16 v[{ac}:{ac+3}], v[{s+4*m}:{s+4*m+3}], v[{r}:{r+3}], v[{ac}:{ac+3}]")
        a("s_nop 7")
        a("s_cmp_ge_u32 s49, 3")
        a(f"s_cbranch_scc1 L_ffn2skip{hb}")
        ffn2_loads(hb)
        a(f"s_branch L_ffn2cont{hb}")
        a(f"L_ffn2skip{hb}:")
        a("s_waitcnt vmcnt(0)")
        a(f"L_ffn2cont{hb}:")
    a(f"""
v_add_u32 v62, 32, v62
s_add_u32 s49, s49, 1
s_cmp_lt_u32 s49, 4
s_cbranch_scc1 L_ffn2
s_nop 7
""")
    for r in range(80, 112):
        a(f"v_min_u32 v{r}, -2, v{r}")
    stamp()
    a(f"""
s_lshl_b32 s37, s2, 13
s_add_u32 s37, s37, {DNB}
v_lshrrev_b32 v61, 1, v2
v_lshlrev_b32 v61, 11, v61
v_lshl_add_u32 v61, v3, 5, v61
v_and_b32 v63, 1, v2
v_lshl_add_u32 v61, v63, 4, v61
v_add_u32 v61, s37, v61
v_add_u32 v62, 0x1000, v61
""")
    for cb in range(4):
        for m in range(2):
            ac = 80 + 8 * cb + 4 * m
            a(f"global_store_dwordx4 v{61+m}, v[{ac}:{ac+3}], s[26:27] offset:{cb*512} sc1")
    a(f"""
L_noffn:
v_mov_b32 v12, {FL_MLW}
L_mlw:
s_sleep 32
ds_read_b32 v13, v12
s_waitcnt lgkmcnt(0)
v_readfirstlane_b32 s36, v13
s_sub_u32 s34, s34, 1
s_cbranch_scc1 L_exit
s_cmp_eq_u32 s36, 0
s_cbranch_scc1 L_mlw
ds_read_b64 v[16:17], v12 offset:128
s_waitcnt lgkmcnt(0)
s_mov_b64 exec, 1
global_store_dwordx2 v59, v[16:17], s[26:27] sc1
s_mov_b64 exec, -1
""")
    dump_stamps(96, 97)
    a(f"""
s_sub_u32 s40, s2, {RED0}
s_cmp_ge_u32 s40, 64
s_cbranch_scc1 L_exit
""")
    wait_L("r", dn_th, 32)
    a(f"""
v_lshlrev_b32 v12, 2, v0
s_mov_b32 s37, 0x01010101
L_fl:
global_load_dword v13, v12, s[24:25] sc1
s_waitcnt vmcnt(0)
v_cmp_ne_u32 vcc, s37, v13
s_cmp_eq_u64 vcc, 0
s_cbranch_scc1 L_flok
s_sub_u32 s34, s34, 1
s_cbranch_scc1 L_exit
s_sleep 64
s_branch L_fl
L_flok:
""")
    stamp()
    a(f"""
s_lshr_b32 s41, s40, 4
s_and_b32 s42, s40, 15
v_lshrrev_b32 v4, 3, v0
v_and_b32 v5, 7, v0
s_lshl_b32 s36, s40, 6
v_lshl_add_u32 v61, v5, 3, s36
global_load_dwordx2 v[24:25], v61, s[4:5]
s_lshl_b32 s36, s41, 11
s_lshl_b32 s37, s42, 7
s_add_u32 s36, s36, s37
s_add_u32 s36, s36, {DNB}
v_lshlrev_b32 v6, 13, v4
v_lshl_add_u32 v6, v5, 4, v6
v_add_u32 v6, s36, v6
v_add_u32 v7, 0x10000, v6
s_lshl_b32 s36, s41, 9
s_add_u32 s36, s36, {MLB}
v_lshl_add_u32 v8, v0, 3, s36
v_mov_b32 v20, 0
v_mov_b32 v21, 0
v_mov_b32 v22, 0
v_mov_b32 v23, 0
L_dn:
global_load_dwordx4 v[16:19], v6, s[26:27] sc1
global_load_dwordx2 v[40:41], v8, s[26:27] sc1
s_mov_b32 exec_hi, 0xffff
global_load_dwordx4 v[20:23], v7, s[26:27] sc1
s_mov_b64 exec, -1
s_waitcnt vmcnt(0)
v_max3_u32 v44, v16, v17, v18
v_max3_u32 v45, v19, v20, v21
v_max3_u32 v46, v22, v23, v40
v_max3_u32 v44, v44, v45, v46
v_max_u32 v44, v44, v41
v_cmp_eq_u32 vcc, -1, v44
s_cmp_eq_u64 vcc, 0
s_cbranch_scc1 L_dnok
s_sub_u32 s34, s34, 1
s_cbranch_scc1 L_exit
s_sleep 32
s_branch L_dn
L_dnok:
""")
    stamp()

    def reduce_q(regs, tmps):
        a("s_nop 1")
        for r in regs:
            a(f"v_add_f32_dpp v{r}, v{r}, v{r} row_ror:8 row_mask:0xf bank_mask:0xf")
        for sw in ("v_permlane16_swap_b32", "v_permlane32_swap_b32"):
            for r, t in zip(regs, tmps):
                a(f"v_mov_b32 v{t}, v{r}")
            a("s_nop 1")
            for r, t in zip(regs, tmps):
                a(f"{sw} v{r}, v{t}")
            a("s_nop 1")
            for r, t in zip(regs, tmps):
                a(f"v_add_f32 v{r}, v{r}, v{t}")

    for k in range(4):
        a(f"v_add_f32 v{16+k}, v{16+k}, v{20+k}")
    reduce_q([16, 17, 18, 19], [20, 21, 22, 23])
    a(f"s_mov_b32 s50, {hex(LOG2E ^ 0x80000000)}")
    for k in range(4):
        bf16r(a, 16 + k, 16 + k)
    for k in range(4):
        a(f"v_mul_f32 v{20+k}, s50, v{16+k}")
    for k in range(4):
        a(f"v_exp_f32 v{20+k}, v{20+k}")
    a("s_nop 0")
    for k in range(4):
        a(f"v_add_f32 v{20+k}, 1.0, v{20+k}")
    for k in range(4):
        a(f"v_rcp_f32 v{20+k}, v{20+k}")
    a("s_nop 0")
    for k in range(4):
        a(f"v_mul_f32 v{16+k}, v{16+k}, v{20+k}")
    for k in range(4):
        bf16r(a, 16 + k, 16 + k)
    a(f"""
v_lshlrev_b32 v26, 16, v24
v_and_b32 v27, 0xffff0000, v24
v_lshlrev_b32 v28, 16, v25
v_and_b32 v29, 0xffff0000, v25
s_mov_b32 s50, {hex(LOG2E)}
v_max_f32_dpp v44, v40, v40 quad_perm:[1,0,3,2] row_mask:0xf bank_mask:0xf
v_sub_f32 v44, v40, v44
v_mul_f32 v44, s50, v44
v_exp_f32 v44, v44
s_nop 0
v_mul_f32 v44, v44, v41
s_nop 1
v_add_f32_dpp v46, v44, v44 quad_perm:[1,0,3,2] row_mask:0xf bank_mask:0xf
v_rcp_f32 v46, v46
v_lshlrev_b32 v9, 5, v5
v_lshl_add_u32 v9, v4, 2, v9
v_add_u32 v9, {FT}, v9
v_mul_f32 v44, v44, v46
ds_write_b32 v9, v44
v_lshlrev_b32 v9, 5, v4
v_add_u32 v9, {FT}, v9
s_waitcnt lgkmcnt(0)
ds_read_b128 v[48:51], v9
ds_read_b128 v[52:55], v9 offset:16
s_lshl_b32 s36, s41, 17
s_lshl_b32 s37, s42, 7
s_add_u32 s36, s36, s37
v_lshlrev_b32 v32, 11, v4
v_lshl_add_u32 v32, v5, 4, v32
v_add_u32 v32, s36, v32
""")
    for i in range(1, 8):
        a(f"v_add_u32 v{32+i}, {i*16384}, v32")
    a("s_waitcnt lgkmcnt(0)")
    a("s_barrier")
    stamp()
    a("L_yw:")
    for i in range(8):
        a(f"global_load_dwordx4 v[{64+4*i}:{67+4*i}], v{32+i}, s[26:27] sc1")
    a("s_waitcnt vmcnt(0)")
    a("v_max3_u32 v44, v64, v65, v66")
    for k in range(67, 95, 2):
        a(f"v_max3_u32 v44, v44, v{k}, v{k+1}")
    a("v_max_u32 v44, v44, v95")
    a(f"""
v_cmp_eq_u32 vcc, -1, v44
s_cmp_eq_u64 vcc, 0
s_cbranch_scc1 L_yok
s_mov_b64 exec, vcc
s_sub_u32 s34, s34, 1
s_cbranch_scc1 L_exit
s_branch L_yw
L_yok:
s_mov_b64 exec, -1
""")
    stamp()
    for k in range(4):
        a(f"v_mul_f32 v{40+k}, v{64+k}, v48")
    for i in range(1, 8):
        for k in range(4):
            a(f"v_fmac_f32 v{40+k}, v{64+4*i+k}, v{48+i}")
    reduce_q([40, 41, 42, 43], [44, 45, 46, 47])
    for k in range(4):
        bf16r(a, 40 + k, 40 + k)
    for k in range(4):
        a(f"v_mul_f32 v{40+k}, v{40+k}, v{16+k}")
    for k in range(4):
        bf16r(a, 40 + k, 40 + k)
    for k in range(4):
        a(f"v_add_f32 v{40+k}, v{40+k}, v{26+k}")
    a(f"""
v_cvt_pk_bf16_f32 v40, v40, v41
v_cvt_pk_bf16_f32 v41, v42, v43
s_mov_b64 exec, 0xff
global_store_dwordx2 v61, v[40:41], s[22:23]
s_mov_b64 exec, -1
""")
    stamp()
    dump_stamps(96, 97)
    a("""
L_exit:
s_endpgm
""")
    a(f"""
.section .rodata,"a"
.p2align 6
.amdhsa_kernel {NAME}
.amdhsa_next_free_vgpr 256
.amdhsa_next_free_sgpr {102 if prof else 64}
.amdhsa_accum_offset 256
.amdhsa_group_segment_fixed_size 0
.amdhsa_kernarg_size 96
.amdhsa_user_sgpr_count 2
.amdhsa_user_sgpr_kernarg_segment_ptr 1
.amdhsa_system_sgpr_workgroup_id_x 1
.amdhsa_float_denorm_mode_32 3
.end_amdhsa_kernel
""")
    return HEADER + f"; @launch grid=(256,1,1) block=(384,1,1) lds={LDS_TOTAL}\n" + a.text()


if __name__ == "__main__":
    import argparse
    p = argparse.ArgumentParser()
    p.add_argument("-o", default="recurrent_scan__mha_block_cached__swiglu_ffn__decode.s")
    p.add_argument("-W", type=int, default=20)
    p.add_argument("--debug", action="store_true")
    p.add_argument("--wq", default="")
    p.add_argument("--wo", default="nt")
    p.add_argument("--ffn", default="nt")
    args = p.parse_args()
    open(args.o, "w").write(gen(W=args.W, debug=args.debug, wq_flags=args.wq, wo_flags=args.wo, ffn_flags=args.ffn))
```

```python
import sys, os
sys.path.insert(0,'../gen')
from gen import gen, NAME
from build import build
os.makedirs("co",exist_ok=True)
cmds=[]
for tag,kw in [("full",dict()),("noffn",dict(no_ffn=True)),("noffn_nostag",dict(no_ffn=True,stag=False)),
               ("Wf24",dict(Wf=24)),("Wf28",dict(Wf=28)),("Wf32",dict(Wf=32)),("Wf40",dict(Wf=40)),("Wf48",dict(Wf=48)),
               ("noffn_W2_40",dict(no_ffn=True,W2=40,n2=116)),("noffn_W2_48_120",dict(no_ffn=True,W2=48,n2=120)),("noffn_W2_32_108",dict(no_ffn=True,W2=32,n2=108)),
               ]:
    for W in [20,22]:
        build(gen(W=W,**kw), f"co/k_{tag}_W{W}")
        cmds.append(f"co/k_{tag}_W{W}.co 31 3 {NAME}:256:384:163840")
build(gen(W=20,prof=True,Wf=32), f"co/p_W20")
cmds.append(f"co/p_W20.co 5 3 {NAME}:256:384:163840 dump=prof.bin")
build(gen(W=20,prof=True,no_ffn=True), f"co/p2_W20")
cmds.append(f"co/p2_W20.co 5 3 {NAME}:256:384:163840 dump=prof2.bin")
open("run.txt","w").write("\n".join(cmds)+"\n")
```

```python
import sys, subprocess, os
def tail(name,nv,waves,nsgpr=32):
    return f""".section .rodata,"a"
.p2align 6
.amdhsa_kernel {name}
  .amdhsa_next_free_vgpr {nv}
  .amdhsa_next_free_sgpr {nsgpr}
  .amdhsa_accum_offset {(nv+3)//4*4}
  .amdhsa_group_segment_fixed_size 0
  .amdhsa_kernarg_size 96
  .amdhsa_user_sgpr_count 2
  .amdhsa_user_sgpr_kernarg_segment_ptr 1
  .amdhsa_system_sgpr_workgroup_id_x 1
.end_amdhsa_kernel
.amdgpu_metadata
---
amdhsa.version: [1, 2]
amdhsa.kernels:
  - .name: {name}
    .symbol: {name}.kd
    .kernarg_segment_size: 96
    .kernarg_segment_align: 8
    .group_segment_fixed_size: 0
    .private_segment_fixed_size: 0
    .wavefront_size: 64
    .sgpr_count: {nsgpr}
    .vgpr_count: {nv}
    .max_flat_workgroup_size: {waves*64}
    .args:
      - {{.name: kernargs, .size: 96, .offset: 0, .value_kind: by_value}}
...
.end_amdgpu_metadata
"""
def gen(name, nwg, waves, D, W, flags, consume=4):
    total = 256<<20
    chunk = total // nwg
    per_wave = chunk // waves
    nld = per_wave // 1024
    o=[]; A=o.append
    A(f""".amdgcn_target "amdgcn-amd-amdhsa--gfx950"
.text
.globl {name}
.p2align 8
.type {name},@function
{name}:
  s_cmp_ge_u32 s2, {nwg}
  s_cbranch_scc1 L_end_{name}
  s_load_dwordx2 s[4:5], s[0:1], 8
  s_load_dwordx2 s[8:9], s[0:1], 16
  s_load_dwordx2 s[16:17], s[0:1], 88
  s_memrealtime s[20:21]
  v_lshrrev_b32 v1, 6, v0
  v_and_b32 v2, 63, v0
  v_lshlrev_b32 v2, 4, v2
  v_mov_b32 v3, 0
  v_readfirstlane_b32 s3, v1
  s_mov_b32 s6, {total}
  s_mov_b32 s7, 0x20000
  s_mov_b32 s10, {total}
  s_mov_b32 s11, 0x20000
  s_mul_i32 s12, s2, {chunk}
  s_mul_i32 s13, s3, 1024
  s_add_u32 s12, s12, s13
  s_mov_b32 s14, s12
  s_waitcnt lgkmcnt(0)
""")
    base=4
    st=waves*1024
    def ld(slot, srd):
        r=base+4*slot
        return f"  buffer_load_dwordx4 v[{r}:{r+3}], v2, s[{srd}:{srd+3}], s14 offen {flags}\n  s_add_u32 s14, s14, {st}\n"
    for j in range(W): A(ld(j,4))
    def body(srdA, srdB, last=False):
        s=""
        for j in range(D):
            if last and j+W>=D: s+=f"  s_waitcnt vmcnt({D-1-j})\n"
            else: s+=f"  s_waitcnt vmcnt({W-1})\n"
            r=base+4*j
            for c in range(consume): s+=f"  v_xor_b32 v3, v3, v{r+(c%4)}\n"
            srd = srdA if j+W<D else srdB
            if j+W==D and srdA!=srdB and srdB is not None: s+="  s_mov_b32 s14, s12\n"
            if srd is not None: s+=ld((j+W)%D,srd)
        return s
    assert nld%D==0
    niter=nld//D
    A(f"  s_mov_b32 s15, {niter-1}\n")
    A(f"L_k_{name}:\n"+body(4,4)+f"  s_sub_u32 s15, s15, 1\n  s_cmp_lg_u32 s15, 0\n  s_cbranch_scc1 L_k_{name}\n")
    A(body(4,8))
    A(f"  s_mov_b32 s15, {niter-1}\n")
    A(f"L_v_{name}:\n"+body(8,8)+f"  s_sub_u32 s15, s15, 1\n  s_cmp_lg_u32 s15, 0\n  s_cbranch_scc1 L_v_{name}\n")
    A(body(8,None,True))
    A(f"""  s_memrealtime s[22:23]
  s_getreg_b32 s24, hwreg(HW_REG_XCC_ID)
  s_getreg_b32 s25, hwreg(HW_REG_HW_ID)
  s_mul_i32 s26, s2, {waves}
  s_add_u32 s26, s26, s3
  s_lshl_b32 s26, s26, 5
  s_waitcnt lgkmcnt(0)
  v_mov_b32 v4, s20
  v_mov_b32 v5, s22
  v_mov_b32 v6, s24
  v_mov_b32 v7, s25
  v_mov_b32 v8, s26
  v_cmp_eq_u32 vcc, 0, v2
  s_and_saveexec_b64 s[28:29], vcc
  global_store_dwordx4 v8, v[4:7], s[16:17]
  global_store_dword v8, v3, s[16:17] offset:16
L_end_{name}:
  s_endpgm
""")
    nv = max(base+4*D+4,12)
    A(tail(name,nv,waves))
    return "".join(o)
if __name__=="__main__":
    os.makedirs("co",exist_ok=True)
    cmds=[]
    cf=[]
    for W in [4,5,6,7,8]: cf.append((256,4,8,W,"nt"))
    for W in [9,10,11,12,13,14,16]: cf.append((256,2,16,W,"nt"))
    for W in [18,20,22,24,26,28,32]: cf.append((256,1,32,W,"nt"))
    for W in [10,12,16]: cf.append((256,4,16,W,"nt"))
    for W in [3]: cf.append((256,8,4,W,"nt"))
    for (nwg,waves,D,W,flags) in cf:
        nm=f"w_{nwg}_{waves}_{D}_{W:02d}_{flags}"
        open(f"co/{nm}.s","w").write(gen("stream_kernel",nwg,waves,D,W,flags))
        subprocess.check_call(["clang","-x","assembler","-target","amdgcn-amd-amdhsa","-mcpu=gfx950",f"co/{nm}.s","-o",f"co/{nm}.co"])
        cmds.append(f"co/{nm}.co 41 3 stream_kernel:{nwg}:{waves*64}:90000")
    open("run4.txt","w").write("\n".join(cmds+cmds)+"\n")
```

```python
import sys, subprocess, os
from gen_stream4 import tail
def gen(name, W, share, wr, rd, nrep, slp, stride=256):
    total = 256<<20; nwg=256; chunk=total//nwg; nld=chunk//1024; U=4; p=1; ring=128
    o=[]; A=o.append
    A(f""".amdgcn_target "amdgcn-amd-amdhsa--gfx950"
.text
.globl {name}
.p2align 8
.type {name},@function
{name}:
  s_cmp_ge_u32 s2, {nwg}
  s_cbranch_scc1 L_end
  s_load_dwordx2 s[4:5], s[0:1], 8
  s_load_dwordx2 s[8:9], s[0:1], 16
  s_load_dwordx2 s[16:17], s[0:1], 88
  v_lshrrev_b32 v1, 6, v0
  v_and_b32 v0, 63, v0
  v_readfirstlane_b32 s3, v1
  v_lshlrev_b32 v2, 4, v0
  s_mov_b32 s6, {total}
  s_mov_b32 s7, 0x20000
  s_mov_b32 s10, {total}
  s_mov_b32 s11, 0x20000
  s_and_b32 s18, s2, 7
  s_lshr_b32 s19, s2, 3
  s_lshl_b32 s18, s18, {p}
  s_and_b32 s27, s19, {(1<<p)-1}
  s_or_b32 s18, s18, s27
  s_lshr_b32 s27, s19, {p}
  s_lshl_b32 s27, s27, {p+3}
  s_or_b32 s18, s18, s27
  s_mul_i32 s12, s18, {chunk}
  s_mov_b32 s14, s12
  s_mov_b32 s30, 0
  s_waitcnt lgkmcnt(0)
  s_cmp_eq_u32 s3, 1
  s_cbranch_scc1 L_wr
  s_setprio 3
""")
    def body(srd):
        s="  s_mov_b32 m0, s30\n"
        for j in range(U):
            s+=f"  s_waitcnt vmcnt({W-1})\n"
            s+=f"  buffer_load_dwordx4 v2, s[{srd}:{srd+3}], s14 offen offset:{j*1024} nt lds\n"
        s+=f"  s_add_u32 s14, s14, {U*1024}\n  s_add_u32 s30, s30, {U*1024}\n  s_and_b32 s30, s30, {ring*1024-1}\n"
        return s
    niter=nld//U
    A(f"  s_mov_b32 s15, {niter}\n")
    A(f"L_k:\n"+body(4)+f"  s_sub_u32 s15, s15, 1\n  s_cmp_lg_u32 s15, 0\n  s_cbranch_scc1 L_k\n")
    A(f"  s_mov_b32 s14, s12\n  s_mov_b32 s15, {niter}\n")
    A(f"L_v:\n"+body(8)+f"  s_sub_u32 s15, s15, 1\n  s_cmp_lg_u32 s15, 0\n  s_cbranch_scc1 L_v\n")
    A("  s_waitcnt vmcnt(0)\n  s_endpgm\nL_wr:\n")
    lg=share.bit_length()-1
    A(f"""  s_lshr_b32 s20, s2, {lg}
  s_mul_i32 s20, s20, {stride}
  s_and_b32 s21, s2, {share-1}
  s_lshl_b32 s21, s21, 2
  s_add_u32 s21, s21, s20
  v_mov_b32 v8, s21
  v_lshl_add_u32 v9, v0, 2, s20
  v_mov_b32 v4, 1
  s_mov_b32 s22, {nrep}
L_rep:
  s_sleep {slp}
""")
    if wr=="st": A("  s_mov_b64 exec, 1\n  global_store_dword v8, v4, s[16:17] sc1\n")
    if wr=="at": A("  s_mov_b64 exec, 1\n  v_mov_b32 v8, s20\n  global_atomic_add v5, v8, v4, s[16:17] sc0 sc1\n")
    if rd: A(f"  s_mov_b64 exec, {(1<<min(share,32))-1 if share<32 else 0x7fffffff}\n  global_load_dword v6, v9, s[16:17] sc1\n")
    A("  s_waitcnt vmcnt(0)\n  s_sub_u32 s22, s22, 1\n  s_cmp_lg_u32 s22, 0\n  s_cbranch_scc1 L_rep\n")
    A("L_end:\n  s_endpgm\n")
    A(tail(name,24,2))
    return "".join(o)
os.makedirs("co",exist_ok=True)
cmds=[]
for W in [20,22]:
  for (share,wr,rd,nrep,slp) in [(1,"",0,24,64),(1,"st",0,24,64),(2,"st",1,24,64),(16,"st",0,24,64),(16,"st",1,24,64),(16,"",1,24,64),(16,"at",0,24,64),(8,"st",1,24,64),(16,"st",1,12,127),(4,"st",1,24,64)]:
    nm=f"w2_W{W}_s{share}_{wr or 'no'}_{rd}_{nrep}"
    open(f"co/{nm}.s","w").write(gen("stream_kernel",W,share,wr,rd,nrep,slp))
    subprocess.check_call(["clang","-x","assembler","-target","amdgcn-amd-amdhsa","-mcpu=gfx950",f"co/{nm}.s","-o",f"co/{nm}.co"])
    cmds.append(f"co/{nm}.co 41 19 stream_kernel:256:128:131072")
open("run.txt","w").write("\n".join(cmds)+"\n")
```

```python
import sys, subprocess, os
from gen_stream4 import tail
def gen(name, W, hb, xors, xb=(0,1,2)):
    total = 256<<20; nwg=256; chunk=total//nwg; nld=chunk//1024
    gm=1<<hb
    o=[]; A=o.append
    rest=[b for b in range(7) if b not in xb]
    place="  s_mov_b32 s25, 0\n"
    for i,b in enumerate(xb): place+=f"  s_bfe_u32 s23, s18, {0x10000+i}\n  s_lshl_b32 s23, s23, {b}\n  s_or_b32 s25, s25, s23\n"
    for i,b in enumerate(rest): place+=f"  s_bfe_u32 s23, s19, {0x10000+i}\n  s_lshl_b32 s23, s23, {b}\n  s_or_b32 s25, s25, s23\n"
    A(f""".amdgcn_target "amdgcn-amd-amdhsa--gfx950"
.text
.globl {name}
.p2align 8
.type {name},@function
{name}:
  s_cmp_ge_u32 s2, {nwg}
  s_cbranch_scc1 L_end
  s_load_dwordx2 s[4:5], s[0:1], 8
  s_load_dwordx2 s[8:9], s[0:1], 16
  s_load_dwordx2 s[16:17], s[0:1], 88
  v_and_b32 v0, 63, v0
  v_lshlrev_b32 v2, 4, v0
  s_mov_b32 s6, {total}
  s_mov_b32 s7, 0x20000
  s_mov_b32 s10, {total}
  s_mov_b32 s11, 0x20000
  s_and_b32 s18, s2, 7
  s_lshr_b32 s19, s2, 3
  s_and_b32 s21, s19, 1
  s_lshr_b32 s19, s19, 1
{place}
  s_lshl_b32 s12, s25, 21
  s_lshl_b32 s21, s21, {hb}
  s_or_b32 s12, s12, s21
  s_mov_b32 s22, s12
""")
    for (sb,db) in xors:
        A(f"  s_lshr_b32 s23, s12, {sb}\n  s_and_b32 s23, s23, 1\n  s_lshl_b32 s23, s23, {db}\n  s_xor_b32 s22, s22, s23\n")
    A("  s_mov_b32 s14, 0\n  s_mov_b32 s30, 0\n  s_waitcnt lgkmcnt(0)\n")
    U=4
    def body(srd):
        if hb < 12:
            s=""
            for j in range(U):
                s+=f"  s_mov_b32 m0, s30\n  s_xor_b32 s24, s22, s14\n  s_waitcnt vmcnt({W-1})\n  buffer_load_dwordx4 v2, s[{srd}:{srd+3}], s24 offen nt lds\n"
                s+=f"  s_or_b32 s14, s14, {gm}\n  s_add_u32 s14, s14, 1024\n  s_andn2_b32 s14, s14, {gm}\n  s_add_u32 s30, s30, 1024\n"
            return s+"  s_and_b32 s30, s30, 0x1ffff\n"
        s="  s_mov_b32 m0, s30\n  s_xor_b32 s24, s22, s14\n"
        for j in range(U):
            s+=f"  s_waitcnt vmcnt({W-1})\n"
            s+=f"  buffer_load_dwordx4 v2, s[{srd}:{srd+3}], s24 offen offset:{j*1024} nt lds\n"
        s+=f"  s_or_b32 s14, s14, {gm}\n  s_add_u32 s14, s14, 4096\n  s_andn2_b32 s14, s14, {gm}\n  s_add_u32 s30, s30, 4096\n  s_and_b32 s30, s30, 0x1ffff\n"
        return s
    niter=nld//U
    def loop(tag,srd,n):
        A(f"  s_mov_b32 s15, {n}\nL_{tag}:\n"+body(srd)+f"  s_sub_u32 s15, s15, 1\n  s_cmp_lg_u32 s15, 0\n  s_cbranch_scc1 L_{tag}\n")
    loop("k0",4,48); A("  s_memrealtime s[40:41]\n"); loop("k1",4,176); A("  s_memrealtime s[42:43]\n"); loop("k2",4,32)
    A("  s_mov_b32 s14, 0\n")
    loop("v0",8,32); A("  s_memrealtime s[44:45]\n"); loop("v1",8,160); A("  s_memrealtime s[46:47]\n"); loop("v2",8,64)
    A("""  s_waitcnt vmcnt(0) lgkmcnt(0)
  s_sub_u32 s40, s42, s40
  s_sub_u32 s44, s46, s44
  v_mov_b32 v4, s40
  v_mov_b32 v5, s44
  s_lshl_b32 s26, s2, 11
  s_add_u32 s26, s26, 0x200000
  v_mov_b32 v6, s26
  s_mov_b64 exec, 1
  global_store_dwordx2 v6, v[4:5], s[16:17]
L_end:
  s_endpgm
""")
    A(tail(name,16,1,64))
    return "".join(o)
if __name__=="__main__":
    os.makedirs("co",exist_ok=True)
    cmds=[]
    cfgs=eval(open("pat3cfg.py").read())
    it=int(os.environ.get("IT","21"))
    for c in cfgs:
        W,hb,xors=c[:3]; xb=c[3] if len(c)>3 else (0,1,2)
        nm=f"p3_W{W}_h{hb}_"+"_".join(f"{a}x{b}" for a,b in xors)+"_xb"+"".join(map(str,xb))
        open(f"co/{nm}.s","w").write(gen("stream_kernel",W,hb,xors,xb))
        subprocess.check_call(["clang","-x","assembler","-target","amdgcn-amd-amdhsa","-mcpu=gfx950",f"co/{nm}.s","-o",f"co/{nm}.co"])
        cmds.append(f"co/{nm}.co {it} 18 stream_kernel:256:64:131072 dumpall=r_{nm}.bin")
    open("run.txt","w").write("\n".join(cmds)+"\n")
```
